```python
import torch

def _softmax(x, axis=-1):
    return torch.softmax(x, dim=axis)
def _gelu(x):
    return torch.nn.functional.gelu(x, approximate="tanh")
def _silu(x):
    return torch.nn.functional.silu(x)
def _sigmoid(x):
    return torch.sigmoid(x)
def _layernorm(x, axis=-1, eps=1e-5):
    m = x.mean(dim=axis, keepdim=True)
    v = x.var(dim=axis, keepdim=True, unbiased=False)
    return (x - m) / torch.sqrt(v + eps)
def _scatter_add(tgt, idx, src, axis=0):
    return tgt.clone().index_add_(axis, idx, src)
def _segment_sum(src, seg, n):
    out = torch.zeros((n,) + src.shape[1:], dtype=src.dtype)
    return out.index_add_(0, seg, src)
def _pad(x, pw):
    flat = tuple(v for pair in reversed(pw) for v in pair)
    return torch.nn.functional.pad(x, flat)

kernel_name = 'recurrent_scan__sliding_local_dilated__glu_gated_reglu__prompt'

def setup_inputs():

    _w = (lambda a: (lambda t: t.to(torch.bfloat16) if t.is_floating_point() else t)(torch.as_tensor(a)))
    def _A_setup():
        B, S, D = 1, 2048, 512
        return {
            "x": _w((lambda *s: torch.randn(*s, dtype=torch.bfloat16) * 0.05)(B, S, D)),
            "wqkv": _w((lambda *s: torch.randn(*s, dtype=torch.bfloat16) * 0.2)(D, 3 * D)),
            "wo": _w((lambda *s: torch.randn(*s, dtype=torch.bfloat16) * 0.2)(D, D)),
        }
    _A_in = _A_setup()

    def _B_setup():
        B, S, D, F = 1, 2048, 512, 1792
        return {
            "x": _w((lambda *s: torch.randn(*s, dtype=torch.bfloat16) * 0.05)(B, S, D)),
            "W_gate": _w((lambda *s: torch.randn(*s, dtype=torch.bfloat16) * 0.1)(D, F) * (2.0 / D) ** 0.5),
            "W_up": _w((lambda *s: torch.randn(*s, dtype=torch.bfloat16) * 0.1)(D, F) * (2.0 / D) ** 0.5),
            "W_down": _w((lambda *s: torch.randn(*s, dtype=torch.bfloat16) * 0.1)(F, D) * (1.0 / F) ** 0.5),
        }
    _B_in = _B_setup()

    return {
        "A_x": _A_in["x"],
        "A_wqkv": _A_in["wqkv"],
        "A_wo": _A_in["wo"],
        "B_x": _B_in["x"],
        "B_W_gate": _B_in["W_gate"],
        "B_W_up": _B_in["W_up"],
        "B_W_down": _B_in["W_down"],
    }

def reference(A_x, A_wqkv, A_wo, B_x, B_W_gate, B_W_up, B_W_down):
    def _A_ref(x, wqkv, wo):
        B, S, D = x.shape
        H = 32; Dh = D // H
        W, dil = 8, 2
        qkv = (lambda x, *d: x.permute(*d))((x @ wqkv).reshape(B, S, 3, H, Dh), 2, 0, 3, 1, 4)
        q, k, v = qkv[0], qkv[1], qkv[2]
        scale = Dh ** -0.5
        pos = torch.arange(S)
        off = torch.arange(W) * dil
        idx = pos[:, None] - off[None, :]
        mask = idx >= 0
        idx_c = torch.where(mask, idx, 0).reshape(-1)
        kg = k[:, :, idx_c, :].reshape(B, H, S, W, Dh)
        vg = v[:, :, idx_c, :].reshape(B, H, S, W, Dh)
        logits = torch.einsum("bhsd,bhswd->bhsw", q, kg) * scale
        logits = torch.where(mask[None, None, :, :], logits, -1e9)
        attn = _softmax(logits, axis=-1)
        o = torch.einsum("bhsw,bhswd->bhsd", attn, vg)
        return (lambda x, *d: x.permute(*d))(o, 0, 2, 1, 3).reshape(B, S, D) @ wo

    def _B_ref(x, W_gate, W_up, W_down):
        gate = torch.einsum("bsd,df->bsf", x, W_gate)
        up = torch.einsum("bsd,df->bsf", x, W_up)
        gate = gate * (lambda x, dt: x.to(dt))(gate > 0, gate.dtype)
        h = gate * up
        return torch.einsum("bsf,fd->bsd", h, W_down)

    x = A_x
    xn = _layernorm(x, axis=-1)
    s = _A_ref(xn, A_wqkv, A_wo)
    g = _silu(_B_ref(xn, B_W_gate, B_W_up, B_W_down))
    return x + s * g
```

```python
import re

TRANS = ("v_exp_f32", "v_log_f32", "v_rcp_f32", "v_rsq_f32", "v_sqrt_f32", "v_sin_f32", "v_cos_f32")

def _regs(tok):
    tok = tok.strip()
    tok = tok.strip("|")
    if tok.startswith("-"):
        tok = tok[1:]
    tok = tok.strip("|")
    m = re.fullmatch(r"([vas])(\d+)", tok)
    if m:
        return [(m.group(1), int(m.group(2)))]
    m = re.fullmatch(r"([vas])\[(\d+):(\d+)\]", tok)
    if m:
        return [(m.group(1), i) for i in range(int(m.group(2)), int(m.group(3)) + 1)]
    if tok == "vcc":
        return [("s", 106), ("s", 107)]
    if tok == "vcc_lo":
        return [("s", 106)]
    if tok == "m0":
        return [("s", 124)]
    if tok == "exec":
        return [("s", 126), ("s", 127)]
    if tok in ("exec_lo",):
        return [("s", 126)]
    if tok in ("exec_hi",):
        return [("s", 127)]
    return []

class Ins:
    def __init__(self, text):
        self.text = text
        t = text.split(";")[0].strip()
        self.label = t.endswith(":")
        self.directive = t.startswith(".") or t == ""
        self.mn = ""
        self.ops = []
        self.dst, self.src = [], []
        self.srcc = []
        self.cls = None
        self.states = 1
        if self.label or self.directive:
            self.states = 0
            return
        parts = t.split(None, 1)
        self.mn = mn = parts[0]
        rest = parts[1] if len(parts) > 1 else ""
        ops = [o.strip() for o in rest.split(",")]
        flat = []
        for o in ops:
            sp = o.split()
            if sp:
                flat.append(sp[0])
                self.mods = sp[1:]
        self.mods = getattr(self, "mods", [])
        self.ops = flat
        R = [_regs(o) for o in flat]
        if mn == "s_nop":
            self.cls = "salu"; self.states = int(flat[0]) + 1; return
        if mn.startswith("v_mfma"):
            self.cls = "mfma"
            self.dst = R[0]; self.src = R[1] + R[2]; self.srcc = R[3]
            return
        if mn.startswith("v_"):
            self.cls = "valu"
            if mn.startswith("v_permlane"):
                self.dst = R[0] + R[1]; self.src = R[0] + R[1]
            elif mn.startswith("v_cmp"):
                self.dst = R[0]; self.src = sum(R[1:], [])
            elif mn.startswith("v_add_co") or mn.startswith("v_sub_co") or mn.startswith("v_addc_co"):
                self.dst = R[0] + R[1]; self.src = sum(R[2:], [])
            elif mn.startswith("v_nop"):
                pass
            else:
                self.dst = R[0]; self.src = sum(R[1:], [])
                if mn.startswith("v_cndmask") and len(flat) == 3:
                    self.src += [("s", 106), ("s", 107)]
                if mn.startswith("v_fmac") or mn.startswith("v_dot2c") or mn.startswith("v_mac"):
                    self.src += R[0]
            return
        if mn.startswith("ds_"):
            self.cls = "ds"
            if mn.startswith("ds_read") or mn.startswith("ds_swizzle") or mn.startswith("ds_bpermute"):
                self.dst = R[0]; self.src = sum(R[1:], [])
            else:
                self.src = sum(R, [])
            return
        if mn.startswith("buffer_") or mn.startswith("global_"):
            self.cls = "vmem"
            self.lds = ("lds" in self.mods) or ("load_lds" in mn)
            if "load" in mn and not self.lds:
                self.dst = R[0]; self.src = sum(R[1:], [])
            else:
                self.src = sum(R, [])
                if self.lds:
                    self.src += [("s", 124)]
            return
        self.cls = "salu"
        if mn.startswith("s_cmp") or mn.startswith("s_waitcnt") or mn.startswith("s_branch") or mn.startswith("s_cbranch") \
                or mn in ("s_barrier", "s_endpgm", "s_setprio", "s_sleep"):
            self.src = sum(R, [])
        else:
            self.dst = R[0] if R else []
            self.src = sum(R[1:], [])

def pad(lines, report=None):
    out = []
    t = 0
    wr = {}
    cread = {}
    sdata = {}
    for text in lines:
        for highest in text.split("\n"):
            I = Ins(highest)
            if I.cls is None:
                out.append(highest); continue
            need = 0
            def req(t0, n):
                nonlocal need
                gap = t - t0 - 1
                if gap < n:
                    need = max(need, n - gap)
            isdpp = ("dpp" in highest) or ("row_" in highest) or ("quad_perm" in highest)
            for r in I.src + I.srcc:
                if r not in wr: continue
                t0, P = wr[r]
                if r[0] in "va":
                    if P.cls == "valu":
                        if I.cls == "mfma": req(t0, 2)
                        if I.mn.startswith("v_permlane") or isdpp: req(t0, 2)
                        if I.mn.startswith("v_readfirstlane") or I.mn.startswith("v_readlane"): req(t0, 1)
                        if P.mn.startswith(TRANS) and I.cls == "valu": req(t0, 1)
                        if P.mn.startswith("v_dot") and not (I.mn == P.mn): req(t0, 3)
                    elif P.cls == "mfma":
                        if I.cls == "mfma":
                            if r in I.srcc and r not in I.src:
                                if I.srcc != P.dst: req(t0, 6)
                            else:
                                req(t0, 8)
                        else:
                            req(t0, 8)
                else:
                    if P.cls == "valu":
                        if I.cls in ("valu", "mfma"): req(t0, 2)
                        if I.cls == "vmem": req(t0, 5)
                    if P.cls == "salu" and r == ("s", 124) and I.cls == "vmem" and I.lds: req(t0, 1)
            for r in I.dst:
                if r in wr and r[0] in "va":
                    t0, P = wr[r]
                    if P.cls == "mfma" and I.cls != "mfma": req(t0, 8)
                    if P.cls == "mfma" and I.cls == "mfma" and I.srcc != P.dst: req(t0, 8)
                if r in cread and I.cls == "valu": req(cread[r], 3)
                if r in sdata: req(sdata[r], 2)
            if need:
                if report is not None: report.append((need, highest))
                k = need
                while k > 0:
                    n = min(k, 16)
                    out.append(f"s_nop {n-1}")
                    t += n; k -= n
            out.append(highest)
            for r in I.dst: wr[r] = (t, I)
            for r in I.srcc: cread[r] = t
            if I.cls == "vmem" and "store" in I.mn and ("x4" in I.mn or "x3" in I.mn):
                for r in _regs(I.ops[0]): sdata[r] = t
            t += I.states
    return out
```

```python
ACC, HACC, BF, HB, AF, HA = 0, 80, 84, 124, 128, 144
BA, BAC, AA, AAC, HBA, HBAC, HAA, DV = 152, 157, 162, 163, 164, 165, 166, 167
LANE, LROW, LCOL, LTR, LI1 = 171, 172, 173, 174, 175
T = 176
NV = 208
DEPTH = 5

def gen_k1(HF_OFF, KP, khead, kdesc):
    L = "gemm1_kernel"
    a = khead(L)
    e = a.append
    e("s_cmp_ge_u32 s2, 256")
    e("s_cbranch_scc1 L_g1_end")
    e("s_load_dwordx2 s[4:5], s[0:1], 8")
    e("s_load_dwordx2 s[6:7], s[0:1], 32")
    e("s_load_dwordx2 s[8:9], s[0:1], 40")
    e("s_load_dwordx2 s[10:11], s[0:1], 72")
    e(f"v_lshrrev_b32 v{T}, 6, v0")
    e(f"v_and_b32 v{LANE}, 63, v0")
    e(f"v_readfirstlane_b32 s12, v{T}")
    e("s_and_b32 s20, s2, 1")
    e("s_lshl_b32 s20, s20, 3")
    e("s_bfe_u32 s21, s2, 0x30003")
    e("s_add_u32 s13, s20, s21")
    e("s_bfe_u32 s20, s2, 0x20001")
    e("s_lshl_b32 s20, s20, 1")
    e("s_bfe_u32 s21, s2, 0x10006")
    e("s_add_u32 s14, s20, s21")
    e("s_and_b32 s15, s12, 3")
    e("s_lshr_b32 s16, s12, 2")
    e(f"v_lshrrev_b32 v{T}, 3, v{LANE}")
    e(f"v_and_b32 v{T+1}, 7, v{LANE}")
    e(f"v_and_b32 v{T+2}, 6, v{T}")
    e(f"v_xor_b32 v{T+1}, v{T+1}, v{T+2}")
    e(f"v_lshlrev_b32 v{LCOL}, 4, v{T+1}")
    e(f"v_and_b32 v{T+2}, 4, v{T}")
    e(f"v_add_u32 v{LROW}, v{T}, v{T+2}")
    e(f"v_bfe_u32 v{T}, v{LANE}, 2, 3")
    e(f"v_lshrrev_b32 v{T+1}, 5, v{LANE}")
    e(f"v_lshlrev_b32 v{T+1}, 11, v{T+1}")
    e(f"v_lshl_add_u32 v{T+1}, v{T}, 7, v{T+1}")
    e(f"v_and_b32 v{T+2}, 3, v{LANE}")
    e(f"v_lshl_add_u32 v{LTR}, v{T+2}, 3, v{T+1}")
    e(f"v_lshrrev_b32 v{LI1}, 1, v{T}")
    e(f"v_lshlrev_b32 v{DV+3}, 4, v{LANE}")
    e("s_lshl_b32 s20, s13, 3")
    e("s_add_u32 s20, s20, s12")
    e("s_lshl_b32 s55, s20, 14")
    e("s_movk_i32 s59, 1024")
    e("s_mov_b32 s50, 0x200000")
    e("s_mov_b32 s51, 0x00020000")
    e(f"s_mov_b32 s70, {HF_OFF + 128*KP*1024}")
    e("s_mov_b32 s71, 0x00020000")
    e("s_mov_b32 s39, 0x00020000")
    e("s_mov_b32 s43, 0x00020000")
    e("s_mov_b32 s47, 0x00020000")
    e("s_mov_b32 s17, 0")
    e("s_mov_b32 s18, 0")
    e("s_mov_b32 s19, 0")
    e("s_waitcnt lgkmcnt(0)")
    e("s_mov_b32 s48, s10")
    e("s_mov_b32 s49, s11")
    e("s_mov_b32 s68, s10")
    e("s_mov_b32 s69, s11")
    e("s_bitcmp1_b32 s2, 7")
    e("s_cbranch_scc1 L_g1_type2")
    body(e, 1, HF_OFF, KP)
    e("s_endpgm")
    e("L_g1_type2:")
    body(e, 2, HF_OFF, KP)
    e("L_g1_end:")
    e("s_endpgm")
    return a, kdesc(L, NV), f"; @launch kernel={L} grid=(256,1,1) block=(512,1,1) lds=163840"

def body(e, ty, HF_OFF, KP):
    NL = 5 if ty == 1 else 6
    STG = NL * 4096 + 8192
    HALO = DEPTH * STG
    P = f"L_g1t{ty}"
    e(f"s_lshl_b32 s63, s12, 10")
    e(f"s_add_u32 s63, s63, {NL*4096}")
    def slot(q, sb):
        sr = 36 + 4*q
        e(f"s_lshl_b32 s{60+q}, s{sb}, 10")
        e(f"s_and_b32 s24, s{sb}, 2")
        e(f"s_lshl_b32 s24, s24, 3")
        e(f"s_and_b32 s25, s{sb}, 1")
        e(f"s_lshl_b32 s25, s25, 2")
        e(f"s_add_u32 s24, s24, s25")
        e(f"s_lshr_b32 s25, s{sb}, 2")
        if ty == 1:
            e(f"s_cmp_eq_u32 s25, 3")
            e(f"s_cselect_b32 s{sr}, s6, s8")
            e(f"s_cselect_b32 s{sr+1}, s7, s9")
            e(f"s_lshl_b32 s26, s25, 10")
            e(f"s_cmp_lt_u32 s25, 3")
            e(f"s_cselect_b32 s{sr}, s4, s{sr}")
            e(f"s_cselect_b32 s{sr+1}, s5, s{sr+1}")
            e(f"s_movk_i32 s27, 3584")
            e(f"s_cselect_b32 s27, 3072, s27")
            e(f"s_cselect_b32 s26, s26, 0")
            e(f"s_lshl_b32 s{sr+2}, s27, 9")
            e(f"s_lshl_b32 s{56+q}, s27, 5")
            e(f"s_lshl_b32 s{52+q}, s14, 7")
            e(f"s_add_u32 s{52+q}, s{52+q}, s26")
        else:
            e(f"s_cmp_lt_u32 s25, 3")
            e(f"s_cselect_b32 s{sr}, s6, s8")
            e(f"s_cselect_b32 s{sr+1}, s7, s9")
            e(f"s_cselect_b32 s26, 0, 3")
            e(f"s_sub_u32 s26, s25, s26")
            e(f"s_lshl_b32 s26, s26, 7")
            e(f"s_movk_i32 s27, 3584")
            e(f"s_mov_b32 s{sr+2}, {512*3584}")
            e(f"s_mov_b32 s{56+q}, {32*3584}")
            e(f"s_mul_i32 s{52+q}, s14, 320")
            e(f"s_andn2_b32 s{52+q}, s{52+q}, 127")
            e(f"s_add_u32 s{52+q}, s{52+q}, 1024")
            e(f"s_add_u32 s{52+q}, s{52+q}, s26")
        e(f"v_add_u32 v{T}, s24, v{LROW}")
        e(f"v_mul_u32_u24 v{T}, s27, v{T}")
        e(f"v_add_u32 v{DV+q}, v{T}, v{LCOL}")
    if ty == 1:
        e("s_mul_i32 s20, s12, 5")
        e("s_lshr_b32 s20, s20, 1")
        e("s_and_b32 s21, s12, 1")
        e("s_add_u32 s22, s20, s21"); slot(0, 22)
        e("s_add_u32 s22, s22, 1"); slot(1, 22)
        e("s_add_u32 s22, s20, 2")
        e("s_cmp_eq_u32 s21, 1")
        e("s_cselect_b32 s22, s20, s22")
        e("s_cselect_b32 s64, 0, -1")
        e("s_cselect_b32 s65, -1, 0")
        slot(2, 22)
    else:
        e("s_mul_i32 s22, s12, 3"); slot(0, 22)
        e("s_add_u32 s22, s22, 1"); slot(1, 22)
        e("s_add_u32 s22, s22, 1"); slot(2, 22)
    def dma():
        for q in range(4):
            e(f"s_add_u32 m0, s18, s{60+q}")
            if ty == 1 and q == 2:
                e("s_mov_b64 exec, s[64:65]")
            e(f"buffer_load_dwordx4 v{DV+q}, s[{36+4*q}:{39+4*q}], s{52+q} offen lds")
            if ty == 1 and q == 2:
                e("s_mov_b64 exec, -1")
            e(f"s_add_u32 s{52+q}, s{52+q}, s{56+q}")
        e(f"s_add_u32 s18, s18, {STG}")
        e(f"s_cmp_eq_u32 s18, {DEPTH*STG}")
        e("s_cselect_b32 s18, 0, s18")
    if ty == 1:
        e("s_lshl_b32 s20, s13, 3")
        e("s_max_u32 s20, s20, 1")
        e("s_sub_u32 s20, s20, 1")
        e("s_lshl_b32 s20, s20, 14")
        e("s_lshl_b32 s21, s12, 11")
        e("s_add_u32 s20, s20, s21")
        e(f"s_add_u32 m0, s21, {HALO}")
        e("s_nop 0")
        e(f"buffer_load_dwordx4 v{DV+3}, s[48:51], s20 offen lds")
        e(f"buffer_load_dwordx4 v{DV+3}, s[48:51], s20 offen offset:1024 lds")
    for s in range(DEPTH - 1):
        dma()
    if ty == 1:
        for p in range(2):
            e(f"s_lshl_b32 s20, s16, 1")
            e(f"s_add_u32 s20, s20, {p}")
            e(f"v_xor_b32 v{T}, s20, v{LI1}")
            e(f"v_lshl_add_u32 v{BA+p}, v{T}, 5, v{LTR}")
        e("s_lshr_b32 s21, s15, 1")
        e("s_lshl_b32 s20, s16, 1")
        e("s_add_u32 s20, s20, s21")
        e("s_and_b32 s21, s15, 1")
        e("s_add_u32 s21, s21, 1")
        e("s_lshl_b32 s21, s21, 12")
        e(f"v_xor_b32 v{T}, s20, v{LI1}")
        e(f"v_lshl_add_u32 v{HBA}, v{T}, 5, v{LTR}")
        e(f"v_add_u32 v{HBA}, s21, v{HBA}")
        e(f"v_add_u32 v{HAA}, {HALO}, v{DV+3}")
        nba = 2
        tiles = [(BAC + (u & 1), (u >> 1) * 4096) for u in range(10)]
    else:
        e("s_and_b32 s20, s14, 1")
        e("s_lshl_b32 s20, s20, 1")
        e("s_mul_i32 s21, s16, 5")
        e("s_add_u32 s20, s20, s21")
        for pu in range(5):
            e(f"s_add_u32 s21, s20, {pu}")
            e("s_and_b32 s22, s21, 3")
            e("s_lshr_b32 s21, s21, 2")
            e("s_lshl_b32 s21, s21, 12")
            e(f"v_xor_b32 v{T}, s22, v{LI1}")
            e(f"v_lshl_add_u32 v{BA+pu}, v{T}, 5, v{LTR}")
            e(f"v_add_u32 v{BA+pu}, s21, v{BA+pu}")
        nba = 5
        tiles = [(BAC + (u >> 1), (u & 1) * 12288) for u in range(10)]
    e("s_lshl_b32 s20, s15, 11")
    e(f"s_add_u32 s20, s20, {NL*4096}")
    e(f"v_add_u32 v{AA}, s20, v{DV+3}")
    for i in range(84):
        e(f"v_mov_b32 v{i}, 0")
    def setaddr():
        for p in range(nba):
            e(f"v_add_u32 v{BAC+p}, s19, v{BA+p}")
        e(f"v_add_u32 v{AAC}, s19, v{AA}")
        if ty == 1:
            e(f"v_add_u32 v{HBAC}, s19, v{HBA}")
        e(f"s_add_u32 s19, s19, {STG}")
        e(f"s_cmp_eq_u32 s19, {DEPTH*STG}")
        e("s_cselect_b32 s19, 0, s19")
    def rdA(p):
        for i in range(2):
            e(f"ds_read_b128 v[{AF+8*p+4*i}:{AF+8*p+4*i+3}], v{AAC} offset:{1024*i}")
        if ty == 1:
            e(f"ds_read_b128 v[{HA+4*p}:{HA+4*p+3}], v{HAA}")
            e(f"v_add_u32 v{HAA}, 1024, v{HAA}")
    def rdB(u):
        ad, off = tiles[u]
        for hh in range(2):
            e(f"ds_read_b64_tr_b16 v[{BF+4*u+2*hh}:{BF+4*u+2*hh+1}], v{ad} offset:{off + 1024*hh}")
    def rdHB():
        for hh in range(2):
            e(f"ds_read_b64_tr_b16 v[{HB+2*hh}:{HB+2*hh+1}], v{HBAC} offset:{1024*hh}")
    def mm(u, p):
        for i in range(2):
            d = ACC + 8*u + 4*i
            e(f"v_mfma_f32_16x16x32_bf16 v[{d}:{d+3}], v[{BF+4*u}:{BF+4*u+3}], v[{AF+8*p+4*i}:{AF+8*p+4*i+3}], v[{d}:{d+3}]")
    setaddr()
    e(f"s_waitcnt vmcnt({4*(DEPTH-2)})")
    e("s_barrier")
    rdA(0)
    for u in range(10):
        rdB(u)
    if ty == 1:
        rdHB()
    e(f"{P}_loop:")
    for p in range(2):
        e("s_waitcnt lgkmcnt(12)")
        mm(0, p)
        setaddr()
        e(f"s_cmp_lt_u32 s17, {16 - DEPTH + 2}")
        e(f"s_cbranch_scc1 {P}_w{p}")
        e("s_waitcnt vmcnt(0)")
        e(f"{P}_w{p}:")
        e(f"s_waitcnt vmcnt({4*(DEPTH-3)})")
        e("s_barrier")
        rdA(p ^ 1)
        rdB(0)
        e(f"s_cmp_ge_u32 s17, {16 - DEPTH + 1}")
        e(f"s_cbranch_scc1 {P}_d{p}")
        dma()
        e(f"{P}_d{p}:")
        for u in range(1, 10):
            e("s_waitcnt lgkmcnt(12)")
            mm(u, p)
            rdB(u)
        if ty == 1:
            e(f"v_mfma_f32_16x16x32_bf16 v[{HACC}:{HACC+3}], v[{HB}:{HB+3}], v[{HA+4*p}:{HA+4*p+3}], v[{HACC}:{HACC+3}]")
            rdHB()
        e("s_add_u32 s17, s17, 1")
    e("s_cmp_lt_u32 s17, 16")
    e(f"s_cbranch_scc1 {P}_loop")
    e("s_waitcnt lgkmcnt(0)")
    e("s_lshl_b32 s20, s13, 3")
    e("s_lshl_b32 s21, s15, 1")
    e("s_add_u32 s20, s20, s21")
    e(f"s_mul_i32 s20, s20, {KP*1024}")
    e(f"s_add_u32 s20, s20, {HF_OFF}")
    def hpair(G, U, out, t):
        for r in range(4):
            e(f"v_max_f32 v{G+r}, 0, v{G+r}")
        e(f"v_cvt_pk_bf16_f32 v{t}, v{G}, v{G+1}")
        e(f"v_cvt_pk_bf16_f32 v{t+1}, v{G+2}, v{G+3}")
        e(f"v_cvt_pk_bf16_f32 v{t+2}, v{U}, v{U+1}")
        e(f"v_cvt_pk_bf16_f32 v{t+3}, v{U+2}, v{U+3}")
        for k in range(2):
            e(f"v_lshlrev_b32 v{G+2*k}, 16, v{t+k}")
            e(f"v_and_b32 v{G+2*k+1}, 0xffff0000, v{t+k}")
            e(f"v_lshlrev_b32 v{U+2*k}, 16, v{t+2+k}")
            e(f"v_and_b32 v{U+2*k+1}, 0xffff0000, v{t+2+k}")
        for r in range(4):
            e(f"v_mul_f32 v{G+r}, v{G+r}, v{U+r}")
        e(f"v_cvt_pk_bf16_f32 v{out}, v{G}, v{G+1}")
        e(f"v_cvt_pk_bf16_f32 v{out+1}, v{G+2}, v{G+3}")
    if ty == 2:
        H = BF
        for i in range(2):
            for pu in range(5):
                hpair(ACC + 16*pu + 4*i, ACC + 16*pu + 8 + 4*i, H + 10*i + 2*pu, T + 4*(pu & 1))
        e("s_mul_i32 s21, s14, 5120")
        e("s_add_u32 s20, s20, s21")
        e(f"s_add_u32 s20, s20, {32*1024}")
        e(f"s_add_u32 s21, s20, {KP*1024}")
        e("s_cmp_eq_u32 s16, 1")
        e(f"s_cbranch_scc1 {P}_st1")
        for i in range(2):
            h = H + 10*i
            e(f"buffer_store_dwordx4 v[{h}:{h+3}], v{DV+3}, s[68:71], s{20+i} offen")
            e(f"buffer_store_dwordx4 v[{h+4}:{h+7}], v{DV+3}, s[68:71], s{20+i} offen offset:1024")
            e(f"buffer_store_dwordx2 v[{h+8}:{h+9}], v{DV+3}, s[68:71], s{20+i} offen offset:2048")
        e("s_endpgm")
        e(f"{P}_st1:")
        e(f"v_add_u32 v{T}, 2048, v{DV+3}")
        for i in range(2):
            h = H + 10*i
            e(f"buffer_store_dwordx2 v[{h}:{h+1}], v{T}, s[68:71], s{20+i} offen offset:8")
            e(f"buffer_store_dwordx4 v[{h+2}:{h+5}], v{T}, s[68:71], s{20+i} offen offset:1024")
            e(f"buffer_store_dwordx4 v[{h+6}:{h+9}], v{T}, s[68:71], s{20+i} offen offset:2048")
        return
    KX = STG
    VX = STG + 18432
    PK = BF
    HP = BF + 24
    for ln in range(3):
        for hd in range(2):
            for i in range(2):
                s_ = ACC + 8*(2*ln + hd) + 4*i
                d = PK + 8*ln + 4*hd + 2*i
                e(f"v_cvt_pk_bf16_f32 v{d}, v{s_}, v{s_+1}")
                e(f"v_cvt_pk_bf16_f32 v{d+1}, v{s_+2}, v{s_+3}")
    e(f"v_cvt_pk_bf16_f32 v{HP}, v{HACC}, v{HACC+1}")
    e(f"v_cvt_pk_bf16_f32 v{HP+1}, v{HACC+2}, v{HACC+3}")
    e(f"v_and_b32 v{T}, 15, v{LANE}")
    e(f"v_lshrrev_b32 v{T+1}, 4, v{LANE}")
    e(f"v_lshlrev_b32 v{T+2}, 5, v{T}")
    e(f"v_lshl_add_u32 v{T+2}, v{T+1}, 3, v{T+2}")
    e("s_mul_i32 s21, s16, 9216")
    e("s_lshl_b32 s22, s15, 10")
    e("s_add_u32 s22, s22, s21")
    e(f"v_add_u32 v{T+3}, s22, v{T+2}")
    e(f"v_lshlrev_b32 v{T+5}, 3, v{LANE}")
    e(f"v_add_u32 v{T+5}, s22, v{T+5}")
    e("s_lshr_b32 s23, s15, 1")
    e("s_mul_i32 s23, s23, 4608")
    e("s_add_u32 s23, s23, s21")
    e("s_and_b32 s24, s15, 1")
    e("s_mul_i32 s24, s24, 18432")
    e("s_add_u32 s23, s23, s24")
    e(f"v_add_u32 v{T+4}, s23, v{T+2}")
    for hd in range(2):
        k1 = PK + 8 + 4*hd + 2
        e(f"ds_write_b64 v{T+3}, v[{k1}:{k1+1}] offset:{KX + hd*4608 + 32*32}")
        for i in range(2):
            v_ = PK + 16 + 4*hd + 2*i
            e(f"ds_write_b64 v{T+3}, v[{v_}:{v_+1}] offset:{VX + hd*4608 + (16+16*i)*32}")
    e(f"ds_write_b64 v{T+4}, v[{HP}:{HP+1}] offset:{KX}")
    HO = AF
    for i in range(2):
        for p in range(2):
            hpair(ACC + 8*(6+p) + 4*i, ACC + 8*(8+p) + 4*i, HO + 4*i + 2*p, T + 8 + 4*p)
    e("s_lshl_b32 s21, s14, 1")
    e("s_add_u32 s21, s21, s16")
    e("s_lshl_b32 s21, s21, 10")
    e("s_add_u32 s20, s20, s21")
    e(f"s_add_u32 s21, s20, {KP*1024}")
    e(f"s_add_u32 s22, s20, {16*1024}")
    e(f"s_add_u32 s23, s21, {16*1024}")
    e("s_waitcnt lgkmcnt(0)")
    e("s_barrier")
    KPV = 110
    VT_ = 48
    for hd in range(2):
        e(f"ds_read_b64 v[{KPV+2*hd}:{KPV+2*hd+1}], v{T+3} offset:{KX + hd*4608}")
    for hd in range(2):
        for R in range(3):
            e(f"ds_read_b64_tr_b16 v[{VT_+6*hd+2*R}:{VT_+6*hd+2*R+1}], v{T+5} offset:{VX + hd*4608 + R*512}")
    for i in range(2):
        e(f"buffer_store_dwordx4 v[{HO+4*i}:{HO+4*i+3}], v{DV+3}, s[68:71], s{22+i} offen")
    BC, BP, BP0 = 60, 64, 68
    NEG = "0xf149f2ca"
    e(f"v_lshlrev_b32 v{T+6}, 2, v{T+1}")
    e(f"v_sub_u32 v{T+6}, v{T}, v{T+6}")
    e(f"v_mov_b32 v{T+7}, {NEG}")
    e("s_or_b32 s24, s13, s15")
    e("s_cmp_eq_u32 s24, 0")
    e("s_cselect_b64 s[26:27], -1, 0")
    for r in range(4):
        e(f"v_subrev_u32 v{T+8}, {r}, v{T+6}")
        e(f"v_and_b32 v{T+9}, 0x80000001, v{T+8}")
        e(f"v_cmp_eq_u32 vcc, 0, v{T+9}")
        e(f"v_cndmask_b32 v{BC+r}, v{T+7}, 0, vcc")
        e(f"v_cmp_eq_u32 vcc, 0x80000000, v{T+9}")
        e(f"v_cndmask_b32 v{BP+r}, v{T+7}, 0, vcc")
        e(f"v_cndmask_b32 v{BP0+r}, v{BP+r}, v{T+7}, s[26:27]")
    e("s_waitcnt lgkmcnt(0)")
    combos = [(hd, i) for hd in range(2) for i in range(2)]
    for c, (hd, i) in enumerate(combos):
        q = PK + 4*hd + 2*i
        kc = PK + 8 + 4*hd + 2*i
        kp_ = (KPV + 2*hd) if i == 0 else (PK + 8 + 4*hd)
        e(f"v_mfma_f32_16x16x16_bf16 v[{8*c}:{8*c+3}], v[{kp_}:{kp_+1}], v[{q}:{q+1}], 0")
        e(f"v_mfma_f32_16x16x16_bf16 v[{8*c+4}:{8*c+7}], v[{kc}:{kc+1}], v[{q}:{q+1}], 0")
    W = 32
    CS = "0x3eb8aa3b"
    e(f"s_mov_b32 s28, {CS}")
    for c in range(4):
        for k in range(4):
            e(f"v_cvt_pk_bf16_f32 v{W+4*c+k}, v{8*c+2*k}, v{8*c+2*k+1}")
    for c in range(4):
        for k in range(4):
            e(f"v_lshlrev_b32 v{8*c+2*k}, 16, v{W+4*c+k}")
            e(f"v_and_b32 v{8*c+2*k+1}, 0xffff0000, v{W+4*c+k}")
    for c, (hd, i) in enumerate(combos):
        for r in range(4):
            e(f"v_fma_f32 v{8*c+r}, v{8*c+r}, s28, v{(BP0 if i == 0 else BP)+r}")
            e(f"v_fma_f32 v{8*c+4+r}, v{8*c+4+r}, s28, v{BC+r}")
    def red(op):
        for c in range(4):
            e(f"{op} v{W+4*c}, v{8*c}, v{8*c+1}")
            e(f"{op} v{W+4*c+1}, v{8*c+2}, v{8*c+3}")
            e(f"{op} v{W+4*c+2}, v{8*c+4}, v{8*c+5}")
            e(f"{op} v{W+4*c+3}, v{8*c+6}, v{8*c+7}")
        for c in range(4):
            e(f"{op} v{W+4*c}, v{W+4*c}, v{W+4*c+1}")
            e(f"{op} v{W+4*c+2}, v{W+4*c+2}, v{W+4*c+3}")
        for c in range(4):
            e(f"{op} v{W+4*c}, v{W+4*c}, v{W+4*c+2}")
        for sw in ("v_permlane32_swap_b32", "v_permlane16_swap_b32"):
            for c in range(4):
                e(f"v_mov_b32 v{W+4*c+1}, v{W+4*c}")
            for c in range(4):
                e(f"{sw} v{W+4*c}, v{W+4*c+1}")
            for c in range(4):
                e(f"{op} v{W+4*c}, v{W+4*c}, v{W+4*c+1}")
    red("v_max_f32")
    for c in range(4):
        for r in range(8):
            e(f"v_sub_f32 v{8*c+r}, v{8*c+r}, v{W+4*c}")
    for c in range(4):
        for r in range(8):
            e(f"v_exp_f32 v{8*c+r}, v{8*c+r}")
    red("v_add_f32")
    for c in range(4):
        e(f"v_rcp_f32 v{W+4*c}, v{W+4*c}")
    for c in range(4):
        for r in range(8):
            e(f"v_mul_f32 v{8*c+r}, v{8*c+r}, v{W+4*c}")
    for c in range(4):
        for k in range(4):
            e(f"v_cvt_pk_bf16_f32 v{W+4*c+k}, v{8*c+2*k}, v{8*c+2*k+1}")
    for c, (hd, i) in enumerate(combos):
        vt = VT_ + 6*hd + 2*i
        e(f"v_mfma_f32_16x16x32_bf16 v[{8*c}:{8*c+3}], v[{vt}:{vt+3}], v[{W+4*c}:{W+4*c+3}], 0")
    OO = 72
    for c, (hd, i) in enumerate(combos):
        e(f"v_cvt_pk_bf16_f32 v{OO+4*i+2*hd}, v{8*c}, v{8*c+1}")
        e(f"v_cvt_pk_bf16_f32 v{OO+4*i+2*hd+1}, v{8*c+2}, v{8*c+3}")
    for i in range(2):
        e(f"buffer_store_dwordx4 v[{OO+4*i}:{OO+4*i+3}], v{DV+3}, s[68:71], s{20+i} offen")
```

```python
import sys, os
sys.path.insert(0, os.path.dirname(os.path.abspath(__file__)))
from asmlib import pad

NAME = "recurrent_scan__sliding_local_dilated__glu_gated_reglu__prompt"
HF_OFF = 2 << 20
KP = 72

HEADER = """; Kernarg layout for this problem (80 bytes, ptrs only, base s[0:1]):
"""

def kdesc(label, vgprs, sgprs=100):
    return f""".p2align 6
.amdhsa_kernel {label}
  .amdhsa_next_free_vgpr {vgprs}
  .amdhsa_next_free_sgpr {sgprs}
  .amdhsa_accum_offset {((vgprs + 3) // 4) * 4}
  .amdhsa_group_segment_fixed_size 0
  .amdhsa_kernarg_size 80
  .amdhsa_user_sgpr_count 2
  .amdhsa_user_sgpr_kernarg_segment_ptr 1
  .amdhsa_system_sgpr_workgroup_id_x 1
.end_amdhsa_kernel
"""

def khead(label):
    return [f".globl {label}", ".p2align 8", f".type {label},@function", f"{label}:"]

def vr(a, n=1):
    return f"v{a}" if n == 1 else f"v[{a}:{a+n-1}]"

def gen_k0():
    L = "ln_kernel"
    a = khead(L)
    e = a.append
    e("s_cmp_ge_u32 s2, 128")
    e("s_cbranch_scc1 L_ln_end")
    e("s_load_dwordx2 s[4:5], s[0:1], 0")
    e("s_load_dwordx2 s[8:9], s[0:1], 72")
    e("v_lshrrev_b32 v1, 6, v0")
    e("v_and_b32 v2, 63, v0")
    e("v_and_b32 v3, 15, v2")
    e("v_lshrrev_b32 v4, 4, v2")
    e("v_lshlrev_b32 v5, 10, v3")
    e("v_lshl_add_u32 v5, v1, 7, v5")
    e("v_lshl_add_u32 v5, v4, 4, v5")
    e("s_lshl_b32 s12, s2, 14")
    e("s_mov_b32 s6, 0x200000")
    e("s_mov_b32 s7, 0x00020000")
    e("s_mov_b32 s10, 0x200000")
    e("s_mov_b32 s11, 0x00020000")
    e("s_waitcnt lgkmcnt(0)")
    e("buffer_load_dwordx4 v[8:11], v5, s[4:7], s12 offen")
    e("buffer_load_dwordx4 v[12:15], v5, s[4:7], s12 offen offset:64")
    e("v_lshlrev_b32 v6, 4, v2")
    e("v_lshl_add_u32 v6, v1, 11, v6")
    e("v_lshlrev_b32 v7, 6, v3")
    e("v_lshl_add_u32 v40, v1, 3, v7")
    e("s_waitcnt vmcnt(0)")
    for i in range(8):
        e(f"v_lshlrev_b32 v{16+2*i}, 16, v{8+i}")
        e(f"v_and_b32 v{17+2*i}, 0xffff0000, v{8+i}")
    e("v_add_f32 v32, v16, v17")
    e("v_mul_f32 v33, v16, v16")
    e("v_mul_f32 v35, v17, v17")
    e("v_add_f32 v34, v18, v19")
    e("v_fmac_f32 v33, v18, v18")
    e("v_fmac_f32 v35, v19, v19")
    for i in range(4, 16, 2):
        e(f"v_add_f32 v32, v32, v{16+i}")
        e(f"v_add_f32 v34, v34, v{17+i}")
        e(f"v_fmac_f32 v33, v{16+i}, v{16+i}")
        e(f"v_fmac_f32 v35, v{17+i}, v{17+i}")
    e("v_add_f32 v32, v32, v34")
    e("v_add_f32 v33, v33, v35")
    for sw in ("v_permlane32_swap_b32", "v_permlane16_swap_b32"):
        e("v_mov_b32 v34, v32")
        e("v_mov_b32 v35, v33")
        e(f"{sw} v32, v34")
        e(f"{sw} v33, v35")
        e("v_add_f32 v32, v32, v34")
        e("v_add_f32 v33, v33, v35")
    e("ds_write_b64 v40, v[32:33]")
    e("s_waitcnt lgkmcnt(0)")
    e("s_barrier")
    for i in range(4):
        e(f"ds_read_b128 v[{44+4*i}:{47+4*i}], v7 offset:{16*i}")
    e("s_waitcnt lgkmcnt(0)")
    e("v_add_f32 v32, v44, v46")
    e("v_add_f32 v33, v45, v47")
    for i in range(2, 8):
        e(f"v_add_f32 v32, v32, v{44+2*i}")
        e(f"v_add_f32 v33, v33, v{45+2*i}")
    e("v_mul_f32 v32, 0x3b000000, v32")
    e("v_mul_f32 v33, 0x3b000000, v33")
    e("v_fma_f32 v33, -v32, v32, v33")
    e("v_max_f32 v33, 0, v33")
    e("v_cvt_pk_bf16_f32 v34, v32, v33")
    e("v_lshlrev_b32 v32, 16, v34")
    e("v_and_b32 v33, 0xffff0000, v34")
    e("v_add_f32 v33, 0x3727c5ac, v33")
    e("v_cvt_pk_bf16_f32 v33, v33, v33")
    e("v_lshlrev_b32 v33, 16, v33")
    e("v_sqrt_f32 v33, v33")
    e("v_cvt_pk_bf16_f32 v33, v33, v33")
    e("v_lshlrev_b32 v33, 16, v33")
    e("v_rcp_f32 v34, v33")
    for i in range(16):
        e(f"v_sub_f32 v{16+i}, v{16+i}, v32")
    for i in range(8):
        e(f"v_cvt_pk_bf16_f32 v{8+i}, v{16+2*i}, v{17+2*i}")
    for i in range(8):
        e(f"v_lshlrev_b32 v{16+2*i}, 16, v{8+i}")
        e(f"v_and_b32 v{17+2*i}, 0xffff0000, v{8+i}")
    for i in range(16):
        e(f"v_mul_f32 v{44+i}, v{16+i}, v34")
    for i in range(16):
        e(f"v_fma_f32 v{16+i}, -v{44+i}, v33, v{16+i}")
    for i in range(16):
        e(f"v_fmac_f32 v{44+i}, v{16+i}, v34")
    for i in range(8):
        e(f"v_cvt_pk_bf16_f32 v{8+i}, v{44+2*i}, v{45+2*i}")
    e("buffer_store_dwordx4 v[8:11], v6, s[8:11], s12 offen")
    e("buffer_store_dwordx4 v[12:15], v6, s[8:11], s12 offen offset:1024")
    e("L_ln_end:")
    e("s_endpgm")
    return a, kdesc(L, 64), f"; @launch kernel={L} grid=(128,1,1) block=(512,1,1) lds=1024"

def gen_k2():
    L = "out_kernel"
    a = khead(L)
    e = a.append
    ACC, AF, BF, XR = 0, 64, 128, 144
    VA = 148
    VB = 152
    VT = 153
    T0 = 157
    e("s_cmp_ge_u32 s2, 256")
    e("s_cbranch_scc1 L_out_end")
    e("s_load_dwordx2 s[4:5], s[0:1], 0")
    e("s_load_dwordx2 s[8:9], s[0:1], 72")
    e("s_load_dwordx2 s[12:13], s[0:1], 16")
    e("s_load_dwordx2 s[14:15], s[0:1], 48")
    e("s_load_dwordx2 s[16:17], s[0:1], 56")
    e(f"v_mov_b32 v{T0}, v0")
    e(f"v_lshrrev_b32 v{T0+1}, 6, v0")
    e(f"v_and_b32 v{T0+2}, 63, v0")
    e(f"v_readfirstlane_b32 s20, v{T0+1}")
    e("s_and_b32 s21, s2, 7")
    e("s_lshl_b32 s21, s21, 2")
    e("s_bfe_u32 s22, s2, 0x20003")
    e("s_add_u32 s21, s21, s22")
    e("s_lshr_b32 s22, s2, 5")
    e(f"v_lshlrev_b32 v{VA}, 4, v{T0+2}")
    for i in range(1, 4):
        e(f"v_add_u32 v{VA+i}, {i*KP*1024}, v{VA}")
    e(f"v_lshrrev_b32 v{T0+3}, 3, v{T0+2}")
    e(f"v_and_b32 v{T0+4}, 7, v{T0+2}")
    e(f"v_and_b32 v{T0+5}, 6, v{T0+3}")
    e(f"v_xor_b32 v{T0+4}, v{T0+4}, v{T0+5}")
    e(f"v_lshlrev_b32 v{T0+4}, 4, v{T0+4}")
    e(f"v_lshl_add_u32 v{VB}, v{T0+3}, 10, v{T0+4}")
    e(f"v_bfe_u32 v{T0+3}, v{T0+2}, 2, 3")
    e(f"v_lshrrev_b32 v{T0+4}, 5, v{T0+2}")
    e(f"v_lshlrev_b32 v{T0+4}, 10, v{T0+4}")
    e(f"v_lshl_add_u32 v{T0+4}, v{T0+3}, 7, v{T0+4}")
    e(f"v_and_b32 v{T0+5}, 3, v{T0+2}")
    e(f"v_lshl_add_u32 v{T0+4}, v{T0+5}, 3, v{T0+4}")
    e(f"v_lshl_add_u32 v{T0+4}, v{T0+1}, 14, v{T0+4}")
    e(f"v_lshrrev_b32 v{T0+3}, 1, v{T0+3}")
    for t in range(4):
        e(f"v_xor_b32 v{T0+5}, {t}, v{T0+3}")
        e(f"v_lshl_add_u32 v{VT+t}, v{T0+5}, 5, v{T0+4}")
    e(f"v_bfe_u32 v{T0+3}, v{T0}, 3, 6")
    e(f"v_and_b32 v{T0+4}, 7, v{T0}")
    e(f"v_lshlrev_b32 v{T0+4}, 4, v{T0+4}")
    e(f"v_lshl_add_u32 v{T0+6}, v{T0+3}, 10, v{T0+4}")
    e("s_lshl_b32 s23, s21, 16")
    e("s_lshl_b32 s24, s22, 7")
    e("s_add_u32 s23, s23, s24")
    e("s_mov_b32 s6, 0x200000")
    e("s_mov_b32 s7, 0x00020000")
    e("s_mov_b32 s18, 0x200000")
    e("s_mov_b32 s19, 0x00020000")
    e(f"s_mov_b32 s10, {HF_OFF + 128*KP*1024}")
    e("s_mov_b32 s11, 0x00020000")
    e(f"s_mul_i32 s25, s21, {4*KP*1024}")
    e("s_lshl_b32 s26, s20, 13")
    e("s_add_u32 s25, s25, s26")
    e(f"s_add_u32 s25, s25, {HF_OFF}")
    e("s_sub_u32 s27, s20, 2")
    e("s_cmp_lt_u32 s20, 2")
    e("s_cselect_b32 s27, s20, s27")
    e("s_lshl_b32 s27, s27, 18")
    e("s_add_u32 s27, s27, s24")
    e("s_lshl_b32 s28, s20, 14")
    e("s_waitcnt lgkmcnt(0)")
    e("s_cmp_lt_u32 s20, 2")
    e("s_cselect_b32 s32, s12, s14")
    e("s_cselect_b32 s33, s13, s15")
    e(f"s_mov_b32 s34, {1792*1024}")
    e(f"s_cselect_b32 s34, 0x80000, s34")
    e("s_mov_b32 s35, 0x00020000")
    e(f"buffer_load_dwordx4 v[{XR}:{XR+3}], v{T0+6}, s[4:7], s23 offen")
    def issue(s):
        sl = s % 4
        for bk in range(4):
            e(f"s_add_u32 m0, s28, {sl*4096 + bk*1024}")
            e(f"s_add_u32 s29, s27, {s*32768 + bk*8192}")
            e(f"buffer_load_dwordx4 v{VB}, s[32:35], s29 offen lds")
        e(f"s_add_u32 s30, s25, {s*1024}")
        for i in range(4):
            e(f"buffer_load_dwordx4 v[{AF+16*sl+4*i}:{AF+16*sl+4*i+3}], v{VA+i}, s[8:11], s30 offen")
    for s in range(4):
        issue(s)
    for i in range(64):
        e(f"v_mov_b32 v{i}, 0")
    for s in range(8):
        sl = s % 4
        later = min(3, 7 - s)
        e(f"s_waitcnt vmcnt({8*later})")
        for t in range(4):
            for hh in range(2):
                e(f"ds_read_b64_tr_b16 v[{BF+4*t+2*hh}:{BF+4*t+2*hh+1}], v{VT+t} offset:{sl*4096 + hh*2048}")
        for t in range(4):
            e(f"s_waitcnt lgkmcnt({6-2*t})")
            for i in range(4):
                d = ACC + 16*i + 4*t
                e(f"v_mfma_f32_16x16x32_bf16 v[{d}:{d+3}], v[{BF+4*t}:{BF+4*t+3}], v[{AF+16*sl+4*i}:{AF+16*sl+4*i+3}], v[{d}:{d+3}]")
        if s + 4 < 8:
            issue(s + 4)
    e(f"v_and_b32 v{T0+3}, 15, v{T0+2}")
    e(f"v_lshrrev_b32 v{T0+4}, 4, v{T0+2}")
    e(f"v_lshlrev_b32 v{T0+5}, 8, v{T0+3}")
    e(f"v_lshl_add_u32 v{T0+5}, v{T0+1}, 14, v{T0+5}")
    e(f"v_xor_b32 v{T0+4}, v{T0+4}, v{T0+3}")
    for t in range(4):
        e(f"v_xor_b32 v{T0+7}, {4*t}, v{T0+4}")
        e(f"v_lshl_add_u32 v{VT+t}, v{T0+7}, 4, v{T0+5}")
    for i in range(4):
        for t in range(4):
            d = ACC + 16*i + 4*t
            e(f"ds_write_b128 v{VT+t}, v[{d}:{d+3}] offset:{i*4096}")
    e("s_waitcnt lgkmcnt(0)")
    e("s_barrier")
    e("s_cmp_ge_u32 s20, 8")
    e("s_cbranch_scc1 L_out_end")
    e(f"v_lshrrev_b32 v{T0+3}, 3, v{T0}")
    e(f"v_and_b32 v{T0+4}, 7, v{T0}")
    e(f"v_lshlrev_b32 v{T0+4}, 1, v{T0+4}")
    e(f"v_and_b32 v{T0+5}, 15, v{T0+3}")
    e(f"v_xor_b32 v{T0+4}, v{T0+4}, v{T0+5}")
    e(f"v_lshlrev_b32 v{T0+3}, 8, v{T0+3}")
    e(f"v_lshl_add_u32 v{VT}, v{T0+4}, 4, v{T0+3}")
    e(f"v_xor_b32 v{VT+1}, 16, v{VT}")
    e(f"v_add_u32 v{VT+2}, 0x10000, v{VT}")
    e(f"v_add_u32 v{VT+3}, 0x10000, v{VT+1}")
    e(f"v_add_u32 v{T0+3}, 0x20000, v{VT}")
    e(f"v_add_u32 v{T0+4}, 0x20000, v{VT+1}")
    for w in range(9):
        for h in range(2):
            ad = [f"v{VT+h}", f"v{VT+2+h}", f"v{T0+3+h}"][w // 4]
            e(f"ds_read_b128 v[{8*w+4*h}:{8*w+4*h+3}], {ad} offset:{(w % 4)*16384}")
        if w == 6:
            e("s_waitcnt lgkmcnt(10)")
            for c in range(8):
                e(f"v_add_f32 v{c}, v{c}, v{8+c}")
    e("s_waitcnt lgkmcnt(0)")
    for c in range(8):
        e(f"v_add_f32 v{16+c}, v{16+c}, v{24+c}")
        e(f"v_add_f32 v{32+c}, v{32+c}, v{40+c}")
        e(f"v_add_f32 v{48+c}, v{48+c}, v{56+c}")
        e(f"v_add_f32 v{16+c}, v{16+c}, v{64+c}")
        e(f"v_add_f32 v{32+c}, v{32+c}, v{48+c}")
        e(f"v_add_f32 v{16+c}, v{16+c}, v{32+c}")
    def rnd(base):
        for c in range(4):
            e(f"v_cvt_pk_bf16_f32 v{72+c}, v{base+2*c}, v{base+2*c+1}")
        for c in range(4):
            e(f"v_lshlrev_b32 v{base+2*c}, 16, v{72+c}")
            e(f"v_and_b32 v{base+2*c+1}, 0xffff0000, v{72+c}")
    rnd(0)
    rnd(16)
    for c in range(8):
        e(f"v_mul_f32 v{24+c}, 0xbfb8aa3b, v{16+c}")
    for c in range(8):
        e(f"v_exp_f32 v{24+c}, v{24+c}")
    for c in range(8):
        e(f"v_add_f32 v{24+c}, 1.0, v{24+c}")
    for c in range(8):
        e(f"v_rcp_f32 v{32+c}, v{24+c}")
    for c in range(8):
        e(f"v_mul_f32 v{40+c}, v{16+c}, v{32+c}")
    for c in range(8):
        e(f"v_fma_f32 v{16+c}, -v{40+c}, v{24+c}, v{16+c}")
    for c in range(8):
        e(f"v_fma_f32 v{16+c}, v{16+c}, v{32+c}, v{40+c}")
    rnd(16)
    for c in range(8):
        e(f"v_mul_f32 v{c}, v{c}, v{16+c}")
    rnd(0)
    for c in range(4):
        e(f"v_lshlrev_b32 v{16+2*c}, 16, v{XR+c}")
        e(f"v_and_b32 v{17+2*c}, 0xffff0000, v{XR+c}")
    for c in range(8):
        e(f"v_add_f32 v{c}, v{c}, v{16+c}")
    for c in range(4):
        e(f"v_cvt_pk_bf16_f32 v{72+c}, v{2*c}, v{2*c+1}")
    e(f"buffer_store_dwordx4 v[72:75], v{T0+6}, s[16:19], s23 offen")
    e("L_out_end:")
    e("s_endpgm")
    return a, kdesc(L, 168), f"; @launch kernel={L} grid=(256,1,1) block=(576,1,1) lds={9*16384}"

from gen_k1 import gen_k1

def build():
    parts = [gen_k0(), gen_k1(HF_OFF, KP, khead, kdesc), gen_k2()]
    txt = HEADER
    for p in parts:
        txt += p[2] + "\n"
    txt += '.amdgcn_target "amdgcn-amd-amdhsa--gfx950"\n.text\n'
    for p in parts:
        rep = []
        txt += "\n".join(pad(p[0], rep)) + "\n"
        if "-v" in sys.argv:
            for n, l in rep: print("pad", n, l)
    txt += '.section .rodata,"a"\n'
    for p in parts:
        txt += p[1]
    return txt

if __name__ == "__main__":
    out = f"cdna_kernels/{NAME}.s"
    for x in sys.argv[1:]:
        if x.endswith(".s"): out = x
    open(out, "w").write(build())
    print("wrote", out)
```

```python
ACC, HACC, BF, HB, AF, HA = 0, 80, 84, 124, 128, 144
BA, BAC, AA, AAC, HBA, HBAC, HAA, DV = 152, 157, 162, 163, 164, 165, 166, 167
LANE, LROW, LCOL, LTR, LI1 = 171, 172, 173, 174, 175
T = 176
NV = 208
DEPTH = 5
DBG = False
X = set()
def stamp(e, k):
    if DBG:
        e(f"s_memtime s[{72+2*k}:{73+2*k}]")
        if k == 0:
            e("s_memrealtime s[84:85]")
def dump(e, ty):
    if DBG:
        e("s_memtime s[80:81]")
        e("s_memrealtime s[82:83]")
        e("s_load_dwordx2 s[88:89], s[0:1], 64")
        e("s_mov_b32 s90, 256")
        e("s_mov_b32 s91, 0x00020000")
        e("s_waitcnt lgkmcnt(0)")
        e("s_cmp_lg_u32 s12, 0")
        e(f"s_cbranch_scc1 L_dbgb{ty}")
        e("s_mov_b64 exec, 1")
        e("v_mov_b32 v0, s84")
        e("v_mov_b32 v1, s82")
        e("s_lshl_b32 s92, s2, 3")
        e("s_add_u32 s92, s92, 0x2000000")
        e("v_mov_b32 v2, s92")
        e("s_mov_b32 s70, 0x4000000")
        e("buffer_store_dwordx2 v[0:1], v2, s[68:71], 0 offen")
        e(f"L_dbgb{ty}:")
        e("s_and_b32 s92, s2, 0x7f")
        e("s_or_b32 s92, s92, s12")
        e("s_cmp_lg_u32 s92, 0")
        e(f"s_cbranch_scc1 L_dbg{ty}")
        e("s_mov_b64 exec, 1")
        for k in range(7):
            e(f"v_mov_b32 v{k}, s{72+2*k}")
        e(f"v_mov_b32 v8, {(ty-1)*32}")
        e("buffer_store_dwordx4 v[0:3], v8, s[88:91], 0 offen")
        e("buffer_store_dwordx4 v[4:7], v8, s[88:91], 0 offen offset:16")
        e(f"L_dbg{ty}:")

def gen_k1(HF_OFF, KP, khead, kdesc):
    L = "gemm1_kernel"
    a = khead(L)
    e = a.append
    e("s_cmp_ge_u32 s2, 256")
    e("s_cbranch_scc1 L_g1_end")
    stamp(e, 0)
    e("s_load_dwordx2 s[4:5], s[0:1], 8")
    e("s_load_dwordx2 s[6:7], s[0:1], 32")
    e("s_load_dwordx2 s[8:9], s[0:1], 40")
    e("s_load_dwordx2 s[10:11], s[0:1], 72")
    e(f"v_lshrrev_b32 v{T}, 6, v0")
    e(f"v_and_b32 v{LANE}, 63, v0")
    e(f"v_readfirstlane_b32 s12, v{T}")
    e("s_and_b32 s20, s2, 1")
    e("s_lshl_b32 s20, s20, 3")
    e("s_bfe_u32 s21, s2, 0x30003")
    e("s_add_u32 s13, s20, s21")
    e("s_bfe_u32 s20, s2, 0x20001")
    e("s_lshl_b32 s20, s20, 1")
    e("s_bfe_u32 s21, s2, 0x10006")
    e("s_add_u32 s14, s20, s21")
    e("s_and_b32 s15, s12, 3")
    e("s_lshr_b32 s16, s12, 2")
    e(f"v_lshrrev_b32 v{T}, 3, v{LANE}")
    e(f"v_and_b32 v{T+1}, 7, v{LANE}")
    e(f"v_and_b32 v{T+2}, 6, v{T}")
    e(f"v_xor_b32 v{T+1}, v{T+1}, v{T+2}")
    e(f"v_lshlrev_b32 v{LCOL}, 4, v{T+1}")
    e(f"v_and_b32 v{T+2}, 4, v{T}")
    e(f"v_add_u32 v{LROW}, v{T}, v{T+2}")
    e(f"v_bfe_u32 v{T}, v{LANE}, 2, 3")
    e(f"v_lshrrev_b32 v{T+1}, 5, v{LANE}")
    e(f"v_lshlrev_b32 v{T+1}, 11, v{T+1}")
    e(f"v_lshl_add_u32 v{T+1}, v{T}, 7, v{T+1}")
    e(f"v_and_b32 v{T+2}, 3, v{LANE}")
    e(f"v_lshl_add_u32 v{LTR}, v{T+2}, 3, v{T+1}")
    e(f"v_lshrrev_b32 v{LI1}, 1, v{T}")
    e(f"v_lshlrev_b32 v{DV+3}, 4, v{LANE}")
    e("s_lshl_b32 s20, s13, 3")
    e("s_add_u32 s20, s20, s12")
    e("s_lshl_b32 s55, s20, 14")
    e("s_movk_i32 s59, 1024")
    e("s_mov_b32 s50, 0x200000")
    e("s_mov_b32 s51, 0x00020000")
    e(f"s_mov_b32 s70, {HF_OFF + 128*KP*1024}")
    e("s_mov_b32 s71, 0x00020000")
    e("s_mov_b32 s39, 0x00020000")
    e("s_mov_b32 s43, 0x00020000")
    e("s_mov_b32 s47, 0x00020000")
    e("s_mov_b32 s17, 0")
    e("s_mov_b32 s18, 0")
    e("s_mov_b32 s19, 0")
    e("s_waitcnt lgkmcnt(0)")
    e("s_mov_b32 s48, s10")
    e("s_mov_b32 s49, s11")
    e("s_mov_b32 s68, s10")
    e("s_mov_b32 s69, s11")
    e("s_bitcmp1_b32 s2, 7")
    e("s_cbranch_scc1 L_g1_type2")
    body(e, 1, HF_OFF, KP)
    e("s_endpgm")
    e("L_g1_type2:")
    body(e, 2, HF_OFF, KP)
    e("L_g1_end:")
    e("s_endpgm")
    return a, kdesc(L, NV), f"; @launch kernel={L} grid=(256,1,1) block=(512,1,1) lds=163840"

def body(e, ty, HF_OFF, KP):
    NL = 5 if ty == 1 else 6
    STG = NL * 4096 + 8192
    HALO = DEPTH * STG
    P = f"L_g1t{ty}"
    e(f"s_lshl_b32 s63, s12, 10")
    e(f"s_add_u32 s63, s63, {NL*4096}")
    def slot(q, sb):
        sr = 36 + 4*q
        e(f"s_lshl_b32 s{60+q}, s{sb}, 10")
        e(f"s_and_b32 s24, s{sb}, 2")
        e(f"s_lshl_b32 s24, s24, 3")
        e(f"s_and_b32 s25, s{sb}, 1")
        e(f"s_lshl_b32 s25, s25, 2")
        e(f"s_add_u32 s24, s24, s25")
        e(f"s_lshr_b32 s25, s{sb}, 2")
        if ty == 1:
            e(f"s_cmp_eq_u32 s25, 3")
            e(f"s_cselect_b32 s{sr}, s6, s8")
            e(f"s_cselect_b32 s{sr+1}, s7, s9")
            e(f"s_lshl_b32 s26, s25, 10")
            e(f"s_cmp_lt_u32 s25, 3")
            e(f"s_cselect_b32 s{sr}, s4, s{sr}")
            e(f"s_cselect_b32 s{sr+1}, s5, s{sr+1}")
            e(f"s_movk_i32 s27, 3584")
            e(f"s_cselect_b32 s27, 3072, s27")
            e(f"s_cselect_b32 s26, s26, 0")
            e(f"s_lshl_b32 s{sr+2}, s27, 9")
            e(f"s_lshl_b32 s{56+q}, s27, 5")
            e(f"s_lshl_b32 s{52+q}, s14, 7")
            e(f"s_add_u32 s{52+q}, s{52+q}, s26")
        else:
            e(f"s_cmp_lt_u32 s25, 3")
            e(f"s_cselect_b32 s{sr}, s6, s8")
            e(f"s_cselect_b32 s{sr+1}, s7, s9")
            e(f"s_cselect_b32 s26, 0, 3")
            e(f"s_sub_u32 s26, s25, s26")
            e(f"s_lshl_b32 s26, s26, 7")
            e(f"s_movk_i32 s27, 3584")
            e(f"s_mov_b32 s{sr+2}, {512*3584}")
            e(f"s_mov_b32 s{56+q}, {32*3584}")
            e(f"s_mul_i32 s{52+q}, s14, 320")
            e(f"s_andn2_b32 s{52+q}, s{52+q}, 127")
            e(f"s_add_u32 s{52+q}, s{52+q}, 1024")
            e(f"s_add_u32 s{52+q}, s{52+q}, s26")
        e(f"v_add_u32 v{T}, s24, v{LROW}")
        e(f"v_mul_u32_u24 v{T}, s27, v{T}")
        e(f"v_add_u32 v{DV+q}, v{T}, v{LCOL}")
    if ty == 1:
        e("s_mul_i32 s20, s12, 5")
        e("s_lshr_b32 s20, s20, 1")
        e("s_and_b32 s21, s12, 1")
        e("s_add_u32 s22, s20, s21"); slot(0, 22)
        e("s_add_u32 s22, s22, 1"); slot(1, 22)
        e("s_add_u32 s22, s20, 2")
        e("s_cmp_eq_u32 s21, 1")
        e("s_cselect_b32 s22, s20, s22")
        e("s_cselect_b32 s64, 0, -1")
        e("s_cselect_b32 s65, -1, 0")
        slot(2, 22)
    else:
        e("s_mul_i32 s22, s12, 3"); slot(0, 22)
        e("s_add_u32 s22, s22, 1"); slot(1, 22)
        e("s_add_u32 s22, s22, 1"); slot(2, 22)
    def dma():
        for q in range(4):
            e(f"s_add_u32 m0, s18, s{60+q}")
            if ty == 1 and q == 2:
                e("s_mov_b64 exec, s[64:65]")
            e(f"buffer_load_dwordx4 v{DV+q}, s[{36+4*q}:{39+4*q}], s{52+q} offen lds")
            if ty == 1 and q == 2:
                e("s_mov_b64 exec, -1")
            e(f"s_add_u32 s{52+q}, s{52+q}, s{56+q}")
        e(f"s_add_u32 s18, s18, {STG}")
        e(f"s_cmp_eq_u32 s18, {DEPTH*STG}")
        e("s_cselect_b32 s18, 0, s18")
    if ty == 1:
        e("s_lshl_b32 s20, s13, 3")
        e("s_max_u32 s20, s20, 1")
        e("s_sub_u32 s20, s20, 1")
        e("s_lshl_b32 s20, s20, 14")
        e("s_lshl_b32 s21, s12, 11")
        e("s_add_u32 s20, s20, s21")
        e(f"s_add_u32 m0, s21, {HALO}")
        e("s_nop 0")
        e(f"buffer_load_dwordx4 v{DV+3}, s[48:51], s20 offen lds")
        e(f"buffer_load_dwordx4 v{DV+3}, s[48:51], s20 offen offset:1024 lds")
    for s in range(DEPTH - 1):
        dma()
    if ty == 1:
        for p in range(2):
            e(f"s_lshl_b32 s20, s16, 1")
            e(f"s_add_u32 s20, s20, {p}")
            e(f"v_xor_b32 v{T}, s20, v{LI1}")
            e(f"v_lshl_add_u32 v{BA+p}, v{T}, 5, v{LTR}")
        e("s_lshr_b32 s21, s15, 1")
        e("s_lshl_b32 s20, s16, 1")
        e("s_add_u32 s20, s20, s21")
        e("s_and_b32 s21, s15, 1")
        e("s_add_u32 s21, s21, 1")
        e("s_lshl_b32 s21, s21, 12")
        e(f"v_xor_b32 v{T}, s20, v{LI1}")
        e(f"v_lshl_add_u32 v{HBA}, v{T}, 5, v{LTR}")
        e(f"v_add_u32 v{HBA}, s21, v{HBA}")
        e(f"v_add_u32 v{HAA}, {HALO}, v{DV+3}")
        nba = 2
        tiles = [(BAC + (u & 1), (u >> 1) * 4096) for u in range(10)]
    else:
        e("s_and_b32 s20, s14, 1")
        e("s_lshl_b32 s20, s20, 1")
        e("s_mul_i32 s21, s16, 5")
        e("s_add_u32 s20, s20, s21")
        for pu in range(5):
            e(f"s_add_u32 s21, s20, {pu}")
            e("s_and_b32 s22, s21, 3")
            e("s_lshr_b32 s21, s21, 2")
            e("s_lshl_b32 s21, s21, 12")
            e(f"v_xor_b32 v{T}, s22, v{LI1}")
            e(f"v_lshl_add_u32 v{BA+pu}, v{T}, 5, v{LTR}")
            e(f"v_add_u32 v{BA+pu}, s21, v{BA+pu}")
        nba = 5
        tiles = [(BAC + (u >> 1), (u & 1) * 12288) for u in range(10)]
    e("s_lshl_b32 s20, s15, 11")
    e(f"s_add_u32 s20, s20, {NL*4096}")
    e(f"v_add_u32 v{AA}, s20, v{DV+3}")
    for i in range(84):
        e(f"v_mov_b32 v{i}, 0")
    def setaddr():
        for p in range(nba):
            e(f"v_add_u32 v{BAC+p}, s19, v{BA+p}")
        e(f"v_add_u32 v{AAC}, s19, v{AA}")
        if ty == 1:
            e(f"v_add_u32 v{HBAC}, s19, v{HBA}")
        e(f"s_add_u32 s19, s19, {STG}")
        e(f"s_cmp_eq_u32 s19, {DEPTH*STG}")
        e("s_cselect_b32 s19, 0, s19")
    def rdA(p):
        for i in range(2):
            e(f"ds_read_b128 v[{AF+8*p+4*i}:{AF+8*p+4*i+3}], v{AAC} offset:{1024*i}")
        if ty == 1:
            e(f"ds_read_b128 v[{HA+4*p}:{HA+4*p+3}], v{HAA}")
            e(f"v_add_u32 v{HAA}, 1024, v{HAA}")
    def rdB(u):
        if "notr" in X: return
        ad, off = tiles[u]
        for hh in range(2):
            e(f"ds_read_b64_tr_b16 v[{BF+4*u+2*hh}:{BF+4*u+2*hh+1}], v{ad} offset:{off + 1024*hh}")
    def rdHB():
        for hh in range(2):
            e(f"ds_read_b64_tr_b16 v[{HB+2*hh}:{HB+2*hh+1}], v{HBAC} offset:{1024*hh}")
    def mm(u, p):
        for i in range(2):
            if "nomfma" in X: continue
            d = ACC + 8*u + 4*i
            e(f"v_mfma_f32_16x16x32_bf16 v[{d}:{d+3}], v[{BF+4*u}:{BF+4*u+3}], v[{AF+8*p+4*i}:{AF+8*p+4*i+3}], v[{d}:{d+3}]")
    setaddr()
    stamp(e, 1)
    e(f"s_waitcnt vmcnt({4*(DEPTH-2)})")
    e("s_barrier")
    stamp(e, 2)
    rdA(0)
    for u in range(10):
        rdB(u)
    if ty == 1:
        rdHB()
    e(f"{P}_loop:")
    for p in range(2):
        e("s_waitcnt lgkmcnt(12)")
        mm(0, p)
        setaddr()
        e(f"s_cmp_lt_u32 s17, {16 - DEPTH + 2}")
        e(f"s_cbranch_scc1 {P}_w{p}")
        e("s_waitcnt vmcnt(0)")
        e(f"{P}_w{p}:")
        e(f"s_waitcnt vmcnt({4*(DEPTH-3)})")
        if "nobar" not in X: e("s_barrier")
        rdA(p ^ 1)
        rdB(0)
        e(f"s_cmp_ge_u32 s17, {16 - DEPTH + 1}")
        e(f"s_cbranch_scc1 {P}_d{p}")
        if "nodma" not in X: dma()
        e(f"{P}_d{p}:")
        for u in range(1, 10):
            e("s_waitcnt lgkmcnt(12)")
            mm(u, p)
            rdB(u)
        if ty == 1:
            e(f"v_mfma_f32_16x16x32_bf16 v[{HACC}:{HACC+3}], v[{HB}:{HB+3}], v[{HA+4*p}:{HA+4*p+3}], v[{HACC}:{HACC+3}]")
            rdHB()
        e("s_add_u32 s17, s17, 1")
    e("s_cmp_lt_u32 s17, 16")
    e(f"s_cbranch_scc1 {P}_loop")
    e("s_waitcnt lgkmcnt(0)")
    stamp(e, 3)
    e("s_lshl_b32 s20, s13, 3")
    e("s_lshl_b32 s21, s15, 1")
    e("s_add_u32 s20, s20, s21")
    e(f"s_mul_i32 s20, s20, {KP*1024}")
    e(f"s_add_u32 s20, s20, {HF_OFF}")
    def hpair(G, U, out, t):
        for r in range(4):
            e(f"v_max_f32 v{G+r}, 0, v{G+r}")
        e(f"v_cvt_pk_bf16_f32 v{t}, v{G}, v{G+1}")
        e(f"v_cvt_pk_bf16_f32 v{t+1}, v{G+2}, v{G+3}")
        e(f"v_cvt_pk_bf16_f32 v{t+2}, v{U}, v{U+1}")
        e(f"v_cvt_pk_bf16_f32 v{t+3}, v{U+2}, v{U+3}")
        for k in range(2):
            if "nogu" in X: continue
            e(f"v_lshlrev_b32 v{G+2*k}, 16, v{t+k}")
            e(f"v_and_b32 v{G+2*k+1}, 0xffff0000, v{t+k}")
            e(f"v_lshlrev_b32 v{U+2*k}, 16, v{t+2+k}")
            e(f"v_and_b32 v{U+2*k+1}, 0xffff0000, v{t+2+k}")
        for r in range(4):
            e(f"v_mul_f32 v{G+r}, v{G+r}, v{U+r}")
        e(f"v_cvt_pk_bf16_f32 v{out}, v{G}, v{G+1}")
        e(f"v_cvt_pk_bf16_f32 v{out+1}, v{G+2}, v{G+3}")
    if ty == 2:
        H = BF
        for i in range(2):
            for pu in range(5):
                hpair(ACC + 16*pu + 4*i, ACC + 16*pu + 8 + 4*i, H + 10*i + 2*pu, T + 4*(pu & 1))
        e("s_mul_i32 s21, s14, 5120")
        e("s_add_u32 s20, s20, s21")
        e(f"s_add_u32 s20, s20, {32*1024}")
        e(f"s_add_u32 s21, s20, {KP*1024}")
        e("s_cmp_eq_u32 s16, 1")
        e(f"s_cbranch_scc1 {P}_st1")
        for i in range(2):
            h = H + 10*i
            e(f"buffer_store_dwordx4 v[{h}:{h+3}], v{DV+3}, s[68:71], s{20+i} offen")
            e(f"buffer_store_dwordx4 v[{h+4}:{h+7}], v{DV+3}, s[68:71], s{20+i} offen offset:1024")
            e(f"buffer_store_dwordx2 v[{h+8}:{h+9}], v{DV+3}, s[68:71], s{20+i} offen offset:2048")
        dump(e, 2)
        e("s_endpgm")
        e(f"{P}_st1:")
        e(f"v_add_u32 v{T}, 2048, v{DV+3}")
        for i in range(2):
            h = H + 10*i
            e(f"buffer_store_dwordx2 v[{h}:{h+1}], v{T}, s[68:71], s{20+i} offen offset:8")
            e(f"buffer_store_dwordx4 v[{h+2}:{h+5}], v{T}, s[68:71], s{20+i} offen offset:1024")
            e(f"buffer_store_dwordx4 v[{h+6}:{h+9}], v{T}, s[68:71], s{20+i} offen offset:2048")
        return
    KX = STG
    VX = STG + 18432
    PK = BF
    HP = BF + 24
    for ln in range(3):
        for hd in range(2):
            for i in range(2):
                s_ = ACC + 8*(2*ln + hd) + 4*i
                d = PK + 8*ln + 4*hd + 2*i
                e(f"v_cvt_pk_bf16_f32 v{d}, v{s_}, v{s_+1}")
                e(f"v_cvt_pk_bf16_f32 v{d+1}, v{s_+2}, v{s_+3}")
    e(f"v_cvt_pk_bf16_f32 v{HP}, v{HACC}, v{HACC+1}")
    e(f"v_cvt_pk_bf16_f32 v{HP+1}, v{HACC+2}, v{HACC+3}")
    e(f"v_and_b32 v{T}, 15, v{LANE}")
    e(f"v_lshrrev_b32 v{T+1}, 4, v{LANE}")
    e(f"v_lshlrev_b32 v{T+2}, 5, v{T}")
    e(f"v_lshl_add_u32 v{T+2}, v{T+1}, 3, v{T+2}")
    e("s_mul_i32 s21, s16, 9216")
    e("s_lshl_b32 s22, s15, 10")
    e("s_add_u32 s22, s22, s21")
    e(f"v_add_u32 v{T+3}, s22, v{T+2}")
    e(f"v_lshlrev_b32 v{T+5}, 3, v{LANE}")
    e(f"v_add_u32 v{T+5}, s22, v{T+5}")
    e("s_lshr_b32 s23, s15, 1")
    e("s_mul_i32 s23, s23, 4608")
    e("s_add_u32 s23, s23, s21")
    e("s_and_b32 s24, s15, 1")
    e("s_mul_i32 s24, s24, 18432")
    e("s_add_u32 s23, s23, s24")
    e(f"v_add_u32 v{T+4}, s23, v{T+2}")
    for hd in range(2):
        k1 = PK + 8 + 4*hd + 2
        e(f"ds_write_b64 v{T+3}, v[{k1}:{k1+1}] offset:{KX + hd*4608 + 32*32}")
        for i in range(2):
            v_ = PK + 16 + 4*hd + 2*i
            e(f"ds_write_b64 v{T+3}, v[{v_}:{v_+1}] offset:{VX + hd*4608 + (16+16*i)*32}")
    e(f"ds_write_b64 v{T+4}, v[{HP}:{HP+1}] offset:{KX}")
    HO = AF
    for i in range(2):
        for p in range(2):
            hpair(ACC + 8*(6+p) + 4*i, ACC + 8*(8+p) + 4*i, HO + 4*i + 2*p, T + 8 + 4*p)
    e("s_lshl_b32 s21, s14, 1")
    e("s_add_u32 s21, s21, s16")
    e("s_lshl_b32 s21, s21, 10")
    e("s_add_u32 s20, s20, s21")
    e(f"s_add_u32 s21, s20, {KP*1024}")
    e(f"s_add_u32 s22, s20, {16*1024}")
    e(f"s_add_u32 s23, s21, {16*1024}")
    e("s_waitcnt lgkmcnt(0)")
    e("s_barrier")
    KPV = 110
    VT_ = 48
    for hd in range(2):
        e(f"ds_read_b64 v[{KPV+2*hd}:{KPV+2*hd+1}], v{T+3} offset:{KX + hd*4608}")
    for hd in range(2):
        for R in range(3):
            e(f"ds_read_b64_tr_b16 v[{VT_+6*hd+2*R}:{VT_+6*hd+2*R+1}], v{T+5} offset:{VX + hd*4608 + R*512}")
    for i in range(2):
        e(f"buffer_store_dwordx4 v[{HO+4*i}:{HO+4*i+3}], v{DV+3}, s[68:71], s{22+i} offen")
    BC, BP, BP0 = 60, 64, 68
    NEG = "0xf149f2ca"
    e(f"v_lshlrev_b32 v{T+6}, 2, v{T+1}")
    e(f"v_sub_u32 v{T+6}, v{T}, v{T+6}")
    e(f"v_mov_b32 v{T+7}, {NEG}")
    e("s_or_b32 s24, s13, s15")
    e("s_cmp_eq_u32 s24, 0")
    e("s_cselect_b64 s[26:27], -1, 0")
    for r in range(4):
        e(f"v_subrev_u32 v{T+8}, {r}, v{T+6}")
        e(f"v_and_b32 v{T+9}, 0x80000001, v{T+8}")
        e(f"v_cmp_eq_u32 vcc, 0, v{T+9}")
        e(f"v_cndmask_b32 v{BC+r}, v{T+7}, 0, vcc")
        e(f"v_cmp_eq_u32 vcc, 0x80000000, v{T+9}")
        e(f"v_cndmask_b32 v{BP+r}, v{T+7}, 0, vcc")
        e(f"v_cndmask_b32 v{BP0+r}, v{BP+r}, v{T+7}, s[26:27]")
    e("s_waitcnt lgkmcnt(0)")
    combos = [(hd, i) for hd in range(2) for i in range(2)]
    for c, (hd, i) in enumerate(combos):
        q = PK + 4*hd + 2*i
        kc = PK + 8 + 4*hd + 2*i
        kp_ = (KPV + 2*hd) if i == 0 else (PK + 8 + 4*hd)
        e(f"v_mfma_f32_16x16x16_bf16 v[{8*c}:{8*c+3}], v[{kp_}:{kp_+1}], v[{q}:{q+1}], 0")
        e(f"v_mfma_f32_16x16x16_bf16 v[{8*c+4}:{8*c+7}], v[{kc}:{kc+1}], v[{q}:{q+1}], 0")
    W = 32
    CS = "0x3eb8aa3b"
    e(f"s_mov_b32 s28, {CS}")
    for c in range(4):
        for k in range(4):
            e(f"v_cvt_pk_bf16_f32 v{W+4*c+k}, v{8*c+2*k}, v{8*c+2*k+1}")
    for c in range(4):
        for k in range(4):
            if "norl" in X: continue
            e(f"v_lshlrev_b32 v{8*c+2*k}, 16, v{W+4*c+k}")
            e(f"v_and_b32 v{8*c+2*k+1}, 0xffff0000, v{W+4*c+k}")
    for c, (hd, i) in enumerate(combos):
        for r in range(4):
            e(f"v_fma_f32 v{8*c+r}, v{8*c+r}, s28, v{(BP0 if i == 0 else BP)+r}")
            e(f"v_fma_f32 v{8*c+4+r}, v{8*c+4+r}, s28, v{BC+r}")
    def red(op):
        for c in range(4):
            e(f"{op} v{W+4*c}, v{8*c}, v{8*c+1}")
            e(f"{op} v{W+4*c+1}, v{8*c+2}, v{8*c+3}")
            e(f"{op} v{W+4*c+2}, v{8*c+4}, v{8*c+5}")
            e(f"{op} v{W+4*c+3}, v{8*c+6}, v{8*c+7}")
        for c in range(4):
            e(f"{op} v{W+4*c}, v{W+4*c}, v{W+4*c+1}")
            e(f"{op} v{W+4*c+2}, v{W+4*c+2}, v{W+4*c+3}")
        for c in range(4):
            e(f"{op} v{W+4*c}, v{W+4*c}, v{W+4*c+2}")
        for sw in ("v_permlane32_swap_b32", "v_permlane16_swap_b32"):
            for c in range(4):
                e(f"v_mov_b32 v{W+4*c+1}, v{W+4*c}")
            for c in range(4):
                e(f"{sw} v{W+4*c}, v{W+4*c+1}")
            for c in range(4):
                e(f"{op} v{W+4*c}, v{W+4*c}, v{W+4*c+1}")
    red("v_max_f32")
    for c in range(4):
        for r in range(8):
            e(f"v_sub_f32 v{8*c+r}, v{8*c+r}, v{W+4*c}")
    for c in range(4):
        for r in range(8):
            e(f"v_exp_f32 v{8*c+r}, v{8*c+r}")
    red("v_add_f32")
    for c in range(4):
        e(f"v_rcp_f32 v{W+4*c}, v{W+4*c}")
    for c in range(4):
        for r in range(8):
            e(f"v_mul_f32 v{8*c+r}, v{8*c+r}, v{W+4*c}")
    for c in range(4):
        for k in range(4):
            e(f"v_cvt_pk_bf16_f32 v{W+4*c+k}, v{8*c+2*k}, v{8*c+2*k+1}")
    for c, (hd, i) in enumerate(combos):
        vt = VT_ + 6*hd + 2*i
        e(f"v_mfma_f32_16x16x32_bf16 v[{8*c}:{8*c+3}], v[{vt}:{vt+3}], v[{W+4*c}:{W+4*c+3}], 0")
    OO = 72
    for c, (hd, i) in enumerate(combos):
        e(f"v_cvt_pk_bf16_f32 v{OO+4*i+2*hd}, v{8*c}, v{8*c+1}")
        e(f"v_cvt_pk_bf16_f32 v{OO+4*i+2*hd+1}, v{8*c+2}, v{8*c+3}")
    for i in range(2):
        e(f"buffer_store_dwordx4 v[{OO+4*i}:{OO+4*i+3}], v{DV+3}, s[68:71], s{20+i} offen")
    dump(e, 1)
```

```python
import sys, os
sys.path.insert(0, os.path.dirname(os.path.abspath(__file__)))
from asmlib import pad

NAME = "recurrent_scan__sliding_local_dilated__glu_gated_reglu__prompt"
HF_OFF = 2 << 20
KP = 72

HEADER = """; Kernarg layout for this problem (80 bytes, ptrs only, base s[0:1]):
"""

def kdesc(label, vgprs, sgprs=100):
    return f""".p2align 6
.amdhsa_kernel {label}
  .amdhsa_next_free_vgpr {vgprs}
  .amdhsa_next_free_sgpr {sgprs}
  .amdhsa_accum_offset {((vgprs + 3) // 4) * 4}
  .amdhsa_group_segment_fixed_size 0
  .amdhsa_kernarg_size 80
  .amdhsa_user_sgpr_count 2
  .amdhsa_user_sgpr_kernarg_segment_ptr 1
  .amdhsa_system_sgpr_workgroup_id_x 1
.end_amdhsa_kernel
"""

def khead(label):
    return [f".globl {label}", ".p2align 8", f".type {label},@function", f"{label}:"]

def vr(a, n=1):
    return f"v{a}" if n == 1 else f"v[{a}:{a+n-1}]"

def gen_k0():
    L = "ln_kernel"
    a = khead(L)
    e = a.append
    e("s_cmp_ge_u32 s2, 128")
    e("s_cbranch_scc1 L_ln_end")
    e("s_load_dwordx2 s[4:5], s[0:1], 0")
    e("s_load_dwordx2 s[8:9], s[0:1], 72")
    e("v_lshrrev_b32 v1, 6, v0")
    e("v_and_b32 v2, 63, v0")
    e("v_and_b32 v3, 15, v2")
    e("v_lshrrev_b32 v4, 4, v2")
    e("v_lshlrev_b32 v5, 10, v3")
    e("v_lshl_add_u32 v5, v1, 7, v5")
    e("v_lshl_add_u32 v5, v4, 4, v5")
    e("s_lshl_b32 s12, s2, 14")
    e("s_mov_b32 s6, 0x200000")
    e("s_mov_b32 s7, 0x00020000")
    e("s_mov_b32 s10, 0x200000")
    e("s_mov_b32 s11, 0x00020000")
    e("s_waitcnt lgkmcnt(0)")
    e("buffer_load_dwordx4 v[8:11], v5, s[4:7], s12 offen")
    e("buffer_load_dwordx4 v[12:15], v5, s[4:7], s12 offen offset:64")
    e("v_lshlrev_b32 v6, 4, v2")
    e("v_lshl_add_u32 v6, v1, 11, v6")
    e("v_lshlrev_b32 v7, 6, v3")
    e("v_lshl_add_u32 v40, v1, 3, v7")
    e("s_waitcnt vmcnt(0)")
    for i in range(8):
        e(f"v_lshlrev_b32 v{16+2*i}, 16, v{8+i}")
        e(f"v_and_b32 v{17+2*i}, 0xffff0000, v{8+i}")
    e("v_add_f32 v32, v16, v17")
    e("v_mul_f32 v33, v16, v16")
    e("v_mul_f32 v35, v17, v17")
    e("v_add_f32 v34, v18, v19")
    e("v_fmac_f32 v33, v18, v18")
    e("v_fmac_f32 v35, v19, v19")
    for i in range(4, 16, 2):
        e(f"v_add_f32 v32, v32, v{16+i}")
        e(f"v_add_f32 v34, v34, v{17+i}")
        e(f"v_fmac_f32 v33, v{16+i}, v{16+i}")
        e(f"v_fmac_f32 v35, v{17+i}, v{17+i}")
    e("v_add_f32 v32, v32, v34")
    e("v_add_f32 v33, v33, v35")
    for sw in ("v_permlane32_swap_b32", "v_permlane16_swap_b32"):
        e("v_mov_b32 v34, v32")
        e("v_mov_b32 v35, v33")
        e(f"{sw} v32, v34")
        e(f"{sw} v33, v35")
        e("v_add_f32 v32, v32, v34")
        e("v_add_f32 v33, v33, v35")
    e("ds_write_b64 v40, v[32:33]")
    e("s_waitcnt lgkmcnt(0)")
    e("s_barrier")
    for i in range(4):
        e(f"ds_read_b128 v[{44+4*i}:{47+4*i}], v7 offset:{16*i}")
    e("s_waitcnt lgkmcnt(0)")
    e("v_add_f32 v32, v44, v46")
    e("v_add_f32 v33, v45, v47")
    for i in range(2, 8):
        e(f"v_add_f32 v32, v32, v{44+2*i}")
        e(f"v_add_f32 v33, v33, v{45+2*i}")
    e("v_mul_f32 v32, 0x3b000000, v32")
    e("v_mul_f32 v33, 0x3b000000, v33")
    e("v_fma_f32 v33, -v32, v32, v33")
    e("v_max_f32 v33, 0, v33")
    e("v_cvt_pk_bf16_f32 v34, v32, v33")
    e("v_lshlrev_b32 v32, 16, v34")
    e("v_and_b32 v33, 0xffff0000, v34")
    e("v_add_f32 v33, 0x3727c5ac, v33")
    e("v_cvt_pk_bf16_f32 v33, v33, v33")
    e("v_lshlrev_b32 v33, 16, v33")
    e("v_sqrt_f32 v33, v33")
    e("v_cvt_pk_bf16_f32 v33, v33, v33")
    e("v_lshlrev_b32 v33, 16, v33")
    e("v_rcp_f32 v34, v33")
    for i in range(16):
        e(f"v_sub_f32 v{16+i}, v{16+i}, v32")
    for i in range(8):
        e(f"v_cvt_pk_bf16_f32 v{8+i}, v{16+2*i}, v{17+2*i}")
    for i in range(8):
        e(f"v_lshlrev_b32 v{16+2*i}, 16, v{8+i}")
        e(f"v_and_b32 v{17+2*i}, 0xffff0000, v{8+i}")
    for i in range(16):
        e(f"v_mul_f32 v{44+i}, v{16+i}, v34")
    for i in range(16):
        e(f"v_fma_f32 v{16+i}, -v{44+i}, v33, v{16+i}")
    for i in range(16):
        e(f"v_fmac_f32 v{44+i}, v{16+i}, v34")
    for i in range(8):
        e(f"v_cvt_pk_bf16_f32 v{8+i}, v{44+2*i}, v{45+2*i}")
    e("buffer_store_dwordx4 v[8:11], v6, s[8:11], s12 offen")
    e("buffer_store_dwordx4 v[12:15], v6, s[8:11], s12 offen offset:1024")
    e("L_ln_end:")
    e("s_endpgm")
    return a, kdesc(L, 64), f"; @launch kernel={L} grid=(128,1,1) block=(512,1,1) lds=1024"

def gen_k2():
    L = "out_kernel"
    a = khead(L)
    e = a.append
    ACC, AF, BF, XR = 0, 64, 128, 144
    VA = 148
    VB = 152
    VT = 153
    T0 = 157
    e("s_cmp_ge_u32 s2, 256")
    e("s_cbranch_scc1 L_out_end")
    e("s_load_dwordx2 s[4:5], s[0:1], 0")
    e("s_load_dwordx2 s[8:9], s[0:1], 72")
    e("s_load_dwordx2 s[12:13], s[0:1], 16")
    e("s_load_dwordx2 s[14:15], s[0:1], 48")
    e("s_load_dwordx2 s[16:17], s[0:1], 56")
    e(f"v_mov_b32 v{T0}, v0")
    e(f"v_lshrrev_b32 v{T0+1}, 6, v0")
    e(f"v_and_b32 v{T0+2}, 63, v0")
    e(f"v_readfirstlane_b32 s20, v{T0+1}")
    e("s_and_b32 s21, s2, 7")
    e("s_lshl_b32 s21, s21, 2")
    e("s_bfe_u32 s22, s2, 0x20003")
    e("s_add_u32 s21, s21, s22")
    e("s_lshr_b32 s22, s2, 5")
    e(f"v_lshlrev_b32 v{VA}, 4, v{T0+2}")
    for i in range(1, 4):
        e(f"v_add_u32 v{VA+i}, {i*KP*1024}, v{VA}")
    e(f"v_lshrrev_b32 v{T0+3}, 3, v{T0+2}")
    e(f"v_and_b32 v{T0+4}, 7, v{T0+2}")
    e(f"v_and_b32 v{T0+5}, 6, v{T0+3}")
    e(f"v_xor_b32 v{T0+4}, v{T0+4}, v{T0+5}")
    e(f"v_lshlrev_b32 v{T0+4}, 4, v{T0+4}")
    e(f"v_lshl_add_u32 v{VB}, v{T0+3}, 10, v{T0+4}")
    e(f"v_bfe_u32 v{T0+3}, v{T0+2}, 2, 3")
    e(f"v_lshrrev_b32 v{T0+4}, 5, v{T0+2}")
    e(f"v_lshlrev_b32 v{T0+4}, 10, v{T0+4}")
    e(f"v_lshl_add_u32 v{T0+4}, v{T0+3}, 7, v{T0+4}")
    e(f"v_and_b32 v{T0+5}, 3, v{T0+2}")
    e(f"v_lshl_add_u32 v{T0+4}, v{T0+5}, 3, v{T0+4}")
    e(f"v_lshl_add_u32 v{T0+4}, v{T0+1}, 14, v{T0+4}")
    e(f"v_lshrrev_b32 v{T0+3}, 1, v{T0+3}")
    for t in range(4):
        e(f"v_xor_b32 v{T0+5}, {t}, v{T0+3}")
        e(f"v_lshl_add_u32 v{VT+t}, v{T0+5}, 5, v{T0+4}")
    e(f"v_bfe_u32 v{T0+3}, v{T0}, 3, 6")
    e(f"v_and_b32 v{T0+4}, 7, v{T0}")
    e(f"v_lshlrev_b32 v{T0+4}, 4, v{T0+4}")
    e(f"v_lshl_add_u32 v{T0+6}, v{T0+3}, 10, v{T0+4}")
    e("s_lshl_b32 s23, s21, 16")
    e("s_lshl_b32 s24, s22, 7")
    e("s_add_u32 s23, s23, s24")
    e("s_mov_b32 s6, 0x200000")
    e("s_mov_b32 s7, 0x00020000")
    e("s_mov_b32 s18, 0x200000")
    e("s_mov_b32 s19, 0x00020000")
    e(f"s_mov_b32 s10, {HF_OFF + 128*KP*1024}")
    e("s_mov_b32 s11, 0x00020000")
    e(f"s_mul_i32 s25, s21, {4*KP*1024}")
    e("s_lshl_b32 s26, s20, 13")
    e("s_add_u32 s25, s25, s26")
    e(f"s_add_u32 s25, s25, {HF_OFF}")
    e("s_sub_u32 s27, s20, 2")
    e("s_cmp_lt_u32 s20, 2")
    e("s_cselect_b32 s27, s20, s27")
    e("s_lshl_b32 s27, s27, 18")
    e("s_add_u32 s27, s27, s24")
    e("s_lshl_b32 s28, s20, 14")
    e("s_waitcnt lgkmcnt(0)")
    e("s_cmp_lt_u32 s20, 2")
    e("s_cselect_b32 s32, s12, s14")
    e("s_cselect_b32 s33, s13, s15")
    e(f"s_mov_b32 s34, {1792*1024}")
    e(f"s_cselect_b32 s34, 0x80000, s34")
    e("s_mov_b32 s35, 0x00020000")
    e(f"buffer_load_dwordx4 v[{XR}:{XR+3}], v{T0+6}, s[4:7], s23 offen")
    def issue(s):
        sl = s % 4
        for bk in range(4):
            e(f"s_add_u32 m0, s28, {sl*4096 + bk*1024}")
            e(f"s_add_u32 s29, s27, {s*32768 + bk*8192}")
            e(f"buffer_load_dwordx4 v{VB}, s[32:35], s29 offen lds")
        e(f"s_add_u32 s30, s25, {s*1024}")
        for i in range(4):
            e(f"buffer_load_dwordx4 v[{AF+16*sl+4*i}:{AF+16*sl+4*i+3}], v{VA+i}, s[8:11], s30 offen")
    for s in range(4):
        issue(s)
    for i in range(64):
        e(f"v_mov_b32 v{i}, 0")
    for s in range(8):
        sl = s % 4
        later = min(3, 7 - s)
        e(f"s_waitcnt vmcnt({8*later})")
        for t in range(4):
            for hh in range(2):
                e(f"ds_read_b64_tr_b16 v[{BF+4*t+2*hh}:{BF+4*t+2*hh+1}], v{VT+t} offset:{sl*4096 + hh*2048}")
        for t in range(4):
            e(f"s_waitcnt lgkmcnt({6-2*t})")
            for i in range(4):
                d = ACC + 16*i + 4*t
                e(f"v_mfma_f32_16x16x32_bf16 v[{d}:{d+3}], v[{BF+4*t}:{BF+4*t+3}], v[{AF+16*sl+4*i}:{AF+16*sl+4*i+3}], v[{d}:{d+3}]")
        if s + 4 < 8:
            issue(s + 4)
    e(f"v_and_b32 v{T0+3}, 15, v{T0+2}")
    e(f"v_lshrrev_b32 v{T0+4}, 4, v{T0+2}")
    e(f"v_lshlrev_b32 v{T0+5}, 8, v{T0+3}")
    e(f"v_lshl_add_u32 v{T0+5}, v{T0+1}, 14, v{T0+5}")
    e(f"v_xor_b32 v{T0+4}, v{T0+4}, v{T0+3}")
    for t in range(4):
        e(f"v_xor_b32 v{T0+7}, {4*t}, v{T0+4}")
        e(f"v_lshl_add_u32 v{VT+t}, v{T0+7}, 4, v{T0+5}")
    for i in range(4):
        for t in range(4):
            d = ACC + 16*i + 4*t
            e(f"ds_write_b128 v{VT+t}, v[{d}:{d+3}] offset:{i*4096}")
    e("s_waitcnt lgkmcnt(0)")
    e("s_barrier")
    e("s_cmp_ge_u32 s20, 8")
    e("s_cbranch_scc1 L_out_end")
    e(f"v_lshrrev_b32 v{T0+3}, 3, v{T0}")
    e(f"v_and_b32 v{T0+4}, 7, v{T0}")
    e(f"v_lshlrev_b32 v{T0+4}, 1, v{T0+4}")
    e(f"v_and_b32 v{T0+5}, 15, v{T0+3}")
    e(f"v_xor_b32 v{T0+4}, v{T0+4}, v{T0+5}")
    e(f"v_lshlrev_b32 v{T0+3}, 8, v{T0+3}")
    e(f"v_lshl_add_u32 v{VT}, v{T0+4}, 4, v{T0+3}")
    e(f"v_xor_b32 v{VT+1}, 16, v{VT}")
    e(f"v_add_u32 v{VT+2}, 0x10000, v{VT}")
    e(f"v_add_u32 v{VT+3}, 0x10000, v{VT+1}")
    e(f"v_add_u32 v{T0+3}, 0x20000, v{VT}")
    e(f"v_add_u32 v{T0+4}, 0x20000, v{VT+1}")
    for w in range(9):
        for h in range(2):
            ad = [f"v{VT+h}", f"v{VT+2+h}", f"v{T0+3+h}"][w // 4]
            e(f"ds_read_b128 v[{8*w+4*h}:{8*w+4*h+3}], {ad} offset:{(w % 4)*16384}")
        if w == 6:
            e("s_waitcnt lgkmcnt(10)")
            for c in range(8):
                e(f"v_add_f32 v{c}, v{c}, v{8+c}")
    e("s_waitcnt lgkmcnt(0)")
    for c in range(8):
        e(f"v_add_f32 v{16+c}, v{16+c}, v{24+c}")
        e(f"v_add_f32 v{32+c}, v{32+c}, v{40+c}")
        e(f"v_add_f32 v{48+c}, v{48+c}, v{56+c}")
        e(f"v_add_f32 v{16+c}, v{16+c}, v{64+c}")
        e(f"v_add_f32 v{32+c}, v{32+c}, v{48+c}")
        e(f"v_add_f32 v{16+c}, v{16+c}, v{32+c}")
    def rnd(base):
        for c in range(4):
            e(f"v_cvt_pk_bf16_f32 v{72+c}, v{base+2*c}, v{base+2*c+1}")
        for c in range(4):
            e(f"v_lshlrev_b32 v{base+2*c}, 16, v{72+c}")
            e(f"v_and_b32 v{base+2*c+1}, 0xffff0000, v{72+c}")
    rnd(0)
    rnd(16)
    for c in range(8):
        e(f"v_mul_f32 v{24+c}, 0xbfb8aa3b, v{16+c}")
    for c in range(8):
        e(f"v_exp_f32 v{24+c}, v{24+c}")
    for c in range(8):
        e(f"v_add_f32 v{24+c}, 1.0, v{24+c}")
    for c in range(8):
        e(f"v_rcp_f32 v{32+c}, v{24+c}")
    for c in range(8):
        e(f"v_mul_f32 v{40+c}, v{16+c}, v{32+c}")
    for c in range(8):
        e(f"v_fma_f32 v{16+c}, -v{40+c}, v{24+c}, v{16+c}")
    for c in range(8):
        e(f"v_fma_f32 v{16+c}, v{16+c}, v{32+c}, v{40+c}")
    rnd(16)
    for c in range(8):
        e(f"v_mul_f32 v{c}, v{c}, v{16+c}")
    rnd(0)
    for c in range(4):
        e(f"v_lshlrev_b32 v{16+2*c}, 16, v{XR+c}")
        e(f"v_and_b32 v{17+2*c}, 0xffff0000, v{XR+c}")
    for c in range(8):
        e(f"v_add_f32 v{c}, v{c}, v{16+c}")
    for c in range(4):
        e(f"v_cvt_pk_bf16_f32 v{72+c}, v{2*c}, v{2*c+1}")
    e(f"buffer_store_dwordx4 v[72:75], v{T0+6}, s[16:19], s23 offen")
    e("L_out_end:")
    e("s_endpgm")
    return a, kdesc(L, 168), f"; @launch kernel={L} grid=(256,1,1) block=(576,1,1) lds={9*16384}"

import gen_k1 as G1
from gen_k1 import gen_k1
if "-dbg" in sys.argv: G1.DBG = True
for x_ in sys.argv:
    if x_.startswith("-x"): G1.X.add(x_[2:])

def build():
    parts = [gen_k0(), gen_k1(HF_OFF, KP, khead, kdesc), gen_k2()]
    txt = HEADER
    for p in parts:
        txt += p[2] + "\n"
    txt += '.amdgcn_target "amdgcn-amd-amdhsa--gfx950"\n.text\n'
    for p in parts:
        rep = []
        txt += "\n".join(pad(p[0], rep)) + "\n"
        if "-v" in sys.argv:
            for n, l in rep: print("pad", n, l)
    txt += '.section .rodata,"a"\n'
    for p in parts:
        txt += p[1]
    return txt

if __name__ == "__main__":
    out = f"cdna_kernels/{NAME}.s"
    for x in sys.argv[1:]:
        if x.endswith(".s"): out = x
    open(out, "w").write(build())
    print("wrote", out)
```
